```python
import torch

def _softmax(x, axis=-1):
    return torch.softmax(x, dim=axis)

def _gelu(x):
    return torch.nn.functional.gelu(x, approximate='tanh')

def _silu(x):
    return torch.nn.functional.silu(x)

def _sigmoid(x):
    return torch.sigmoid(x)

def _layernorm(x, axis=-1, eps=1e-05):
    m = x.mean(dim=axis, keepdim=True)
    v = x.var(dim=axis, keepdim=True, unbiased=False)
    return (x - m) / torch.sqrt(v + eps)

def _scatter_add(tgt, idx, src, axis=0):
    return tgt.clone().index_add_(axis, idx, src)

def _segment_sum(src, seg, n):
    out = torch.zeros((n,) + src.shape[1:], dtype=src.dtype)
    return out.index_add_(0, seg, src)

def _pad(x, pw):
    flat = tuple((v for pair in reversed(pw) for v in pair))
    return torch.nn.functional.pad(x, flat)
kernel_name = 'interleave_layers__memory_aug_recurrent_mem_tr__mha_block__prompt'

def setup_inputs():

    _w = lambda a: (lambda t: t.to(torch.bfloat16) if t.is_floating_point() else t)(torch.as_tensor(a))

    def _A_setup():
        B, S, Dm = (1, 2048, 576)
        H, Dh = (32, 128)
        M, seg = (8, 32)
        seg = min(seg, S)
        S = S // seg * seg
        return {'x': _w((lambda *s: torch.randn(*s, dtype=torch.bfloat16) * 0.05)(B, S, Dm)), 'mem0': _w((lambda *s: torch.randn(*s, dtype=torch.bfloat16) * 0.2)(B, M, Dm)), 'Wq': _w((lambda *s: torch.randn(*s, dtype=torch.bfloat16) * 1.6)(Dm, H, Dh) * Dm ** (-0.5)), 'Wk': _w((lambda *s: torch.randn(*s, dtype=torch.bfloat16) * 1.6)(Dm, H, Dh) * Dm ** (-0.5)), 'Wv': _w((lambda *s: torch.randn(*s, dtype=torch.bfloat16) * 0.2)(Dm, H, Dh) * Dm ** (-0.5)), 'Wo': _w((lambda *s: torch.randn(*s, dtype=torch.bfloat16) * 0.2)(H, Dh, Dm) * (H * Dh) ** (-0.5)), 'seg_len': seg}
    _A_in = _A_setup()

    def _B_setup():
        B, S, D, H = (1, 2048, 576, 32)
        return {'x': _w((lambda *s: torch.randn(*s, dtype=torch.bfloat16) * 0.05)(B, S, D)), 'wqkv': _w((lambda *s: torch.randn(*s, dtype=torch.bfloat16) * 0.05)(D, 3 * D)), 'wo': _w((lambda *s: torch.randn(*s, dtype=torch.bfloat16) * 0.05)(D, D))}
    _B_in = _B_setup()
    return {'A_x': _A_in['x'], 'A_mem0': _A_in['mem0'], 'A_Wq': _A_in['Wq'], 'A_Wk': _A_in['Wk'], 'A_Wv': _A_in['Wv'], 'A_Wo': _A_in['Wo'], 'A_seg_len': _A_in['seg_len'], 'B_x': _B_in['x'], 'B_wqkv': _B_in['wqkv'], 'B_wo': _B_in['wo']}

def reference(A_x, A_mem0, A_Wq, A_Wk, A_Wv, A_Wo, A_seg_len, B_x, B_wqkv, B_wo):

    def _A_ref(x, mem0, Wq, Wk, Wv, Wo, seg_len):
        B, S, Dm = x.shape
        H, Dh = (Wq.shape[1], Wq.shape[2])
        M = mem0.shape[1]
        scale = Dh ** (-0.5)
        n_seg = S // seg_len
        L = M + seg_len
        idx = torch.arange(L)
        mask = (idx[:, None] < M) | (idx[:, None] >= idx[None, :])
        mem = mem0
        outs = []
        for s in range(n_seg):
            xs = x[:, s * seg_len:(s + 1) * seg_len, :].clone()
            h = torch.concatenate([mem, xs], axis=1)
            q = torch.einsum('btd,dhe->bhte', h, Wq)
            k = torch.einsum('btd,dhe->bhte', h, Wk)
            v = torch.einsum('btd,dhe->bhte', h, Wv)
            scores = torch.einsum('bhqe,bhke->bhqk', q, k) * scale
            scores = torch.where(mask[None, None], scores, -1000000000.0)
            p = _softmax(scores, axis=-1)
            o = torch.einsum('bhqk,bhke->bhqe', p, v)
            o = torch.einsum('bhte,hed->btd', o, Wo)
            mem = o[:, :M, :].clone()
            outs.append(o[:, M:, :])
        return torch.concatenate(outs, axis=1)

    def _B_ref(x, wqkv, wo):
        B, S, D = x.shape
        H = 32
        Dh = D // H
        qkv = (lambda x, *d: x.permute(*d))((x @ wqkv).reshape(B, S, 3, H, Dh), 2, 0, 3, 1, 4)
        q, k, v = (qkv[0], qkv[1], qkv[2])
        scores = torch.einsum('bhqd,bhkd->bhqk', q, k) * Dh ** (-0.5)
        p = _softmax(scores, axis=-1)
        o = torch.einsum('bhqk,bhkd->bhqd', p, v)
        return (lambda x, *d: x.permute(*d))(o, 0, 2, 1, 3).reshape(B, S, D) @ wo
    x = A_x
    x = x + _A_ref(_layernorm(x, axis=-1), A_mem0, A_Wq, A_Wk, A_Wv, A_Wo, A_seg_len)
    x = x + _B_ref(_layernorm(x, axis=-1), B_wqkv, B_wo)
    x = x + _A_ref(_layernorm(x, axis=-1), A_mem0, A_Wq, A_Wk, A_Wv, A_Wo, A_seg_len)
    x = x + _B_ref(_layernorm(x, axis=-1), B_wqkv, B_wo)
    return x
```

```python
import re, random

class Prog:
    def __init__(self):
        self.lines = []
    def I(self, *xs):
        for x in xs:
            if isinstance(x, (list, tuple)):
                self.I(*x)
            elif x is None:
                continue
            else:
                for ln in str(x).split('\n'):
                    ln = ln.strip()
                    if ln:
                        self.lines.append(ln)
        return self
    __call__ = I
    def text(self):
        return fmt(self.lines)

def fmt(lines):
    return ''.join((x + '\n' if (x.endswith(':') or x.startswith('.')) else '    ' + x + '\n') for x in lines)

def nopl(n):
    s = []
    while n > 0:
        k = min(n, 16); s.append(f's_nop {k-1}'); n -= k
    return s

VTOK = re.compile(r'%([A-Za-z_][A-Za-z0-9_]*)(?:\[(\d+)(?::(\d+))?\])?')
PTOK = re.compile(r'(?<![A-Za-z0-9_%])([vas])(?:(\d+)(?![A-Za-z0-9_\[])|\[(\d+):(\d+)\])')

def split_ops(line):
    line = line.split(';')[0].strip()
    p = line.split(None, 1)
    op = p[0]
    if len(p) == 1:
        return op, []
    ops = []; cur = ''; depth = 0
    for ch in p[1]:
        if ch in '[(': depth += 1
        if ch in '])': depth -= 1
        if ch == ',' and depth == 0:
            ops.append(cur.strip()); cur = ''
        else:
            cur += ch
    ops.append(cur.strip())
    return op, ops

def classify(line):
    op, ops = split_ops(line)
    if line.endswith(':') or op.startswith('.'):
        return op, [], []
    if op == '@use': return op, [], ops
    if op == '@def': return op, ops, []
    if op.startswith('@'): return op, [], []
    if op.startswith('v_smfmac'): return op, ops[:1], ops
    if op.startswith('v_mfma'): return op, ops[:1], ops[1:]
    if op.startswith('v_permlane') or op.startswith('v_swap'): return op, ops[:2], ops[:2]
    if op.startswith('v_cmp'): return op, ops[:1], ops[1:]
    if op.startswith('v_nop'): return op, [], []
    if op.startswith('v_'):
        if '_co_' in op or op.startswith('v_div_scale') or op.startswith('v_mad_u64'):
            return op, ops[:2], ops[2:]
        rmw = op.startswith(('v_fmac', 'v_dot2c', 'v_writelane', 'v_pk_fmac'))
        if 'dpp' in op and not ('row_mask:0xf' in line and 'bank_mask:0xf' in line): rmw = True
        if 'UNUSED_PRESERVE' in line: rmw = True
        return op, ops[:1], (ops if rmw else ops[1:])
    if op.startswith(('ds_read', 'ds_bpermute', 'ds_permute', 'ds_swizzle')): return op, ops[:1], ops[1:]
    if op.startswith('ds_'): return op, [], ops
    if op.startswith('buffer_load'):
        if re.search(r'\blds\b', line): return op, [], ops
        if 'd16' in op: return op, ops[:1], ops
        return op, ops[:1], ops[1:]
    if op.startswith('buffer_atomic'):
        if re.search(r'\bsc0\b', line): return op, ops[:1], ops
        return op, [], ops
    if op.startswith('buffer_'): return op, [], ops
    if op.startswith('global_load'):
        if 'lds' in op: return op, [], ops
        return op, ops[:1], ops[1:]
    if op.startswith('global_'): return op, [], ops
    if op.startswith('s_'):
        if op.startswith(('s_cmp', 's_cbranch', 's_branch', 's_waitcnt', 's_nop', 's_barrier', 's_sleep', 's_setprio', 's_endpgm', 's_bitcmp', 's_setreg')):
            return op, [], ops
        return op, ops[:1], ops[1:]
    raise ValueError('unknown instruction: ' + line)

class Alloc:
    def __init__(self, pool, pinned=None):
        self.pool = list(pool); self.size = {}; self.pin = dict(pinned or {}); self.map = {}
    def decl(self, **kw):
        self.size.update(kw)
    def elems(self, s):
        out = []
        for m in VTOK.finditer(s):
            n = m.group(1)
            if n not in self.size: raise KeyError('undeclared vreg ' + n + ' in ' + s)
            if m.group(2) is None: r = range(self.size[n])
            elif m.group(3) is None: r = [int(m.group(2))]
            else: r = range(int(m.group(2)), int(m.group(3)) + 1)
            for i in r:
                assert i < self.size[n], s
                out.append((n, i))
        return out
    def run(self, lines, loop=True, seed=0, tries=60, verbose=False):
        N = len(lines)
        du = []
        for ln in lines:
            op, d, u = classify(ln)
            du.append((op, set(e for x in d for e in self.elems(x)), set(e for x in u for e in self.elems(x))))
        live = set(); occ = {}
        for rnd in range(2 if loop else 1):
            for i in range(N - 1, -1, -1):
                op, d, u = du[i]
                for e in live | d: occ.setdefault(e, set()).add(2 * i + 1)
                live = (live - d) | u
                for e in live: occ.setdefault(e, set()).add(2 * i)
                wide = not (op.startswith('v_') and not op.startswith(('v_mfma', 'v_smfmac', 'v_pk_', 'v_mov_b64')))
                if wide:
                    for e in d: occ.setdefault(e, set()).add(2 * i)
                if op.startswith(('buffer_store', 'global_store')):
                    for e in u:
                        for k in range(1, 6): occ.setdefault(e, set()).add((2 * i + k) % (2 * N))
        self.livein = live
        bits = {e: sum(1 << p for p in s) for e, s in occ.items()}
        names = sorted(set(n for n, _ in bits))
        peak = 0
        base = {}
        for n in names:
            if n in self.pin:
                for i in range(self.size[n]):
                    r = self.pin[n] + i
                    b = bits.get((n, i), 0)
                    assert not (base.get(r, 0) & b), f'pinned overlap {n}'
                    base[r] = base.get(r, 0) | b
        free = [n for n in names if n not in self.pin]
        poolset = set(self.pool)
        rng = random.Random(seed)
        wt = {n: sum(bin(bits.get((n, i), 0)).count('1') for i in range(self.size[n])) for n in free}
        order = sorted(free, key=lambda n: (-self.size[n], -wt[n]))
        B = {n: [bits.get((n, i), 0) for i in range(self.size[n])] for n in free}
        cand0 = {n: [r for r in self.pool if (self.size[n] == 1 or r % 2 == 0) and all((r + i) in poolset for i in range(self.size[n]))] for n in free}
        allb = {n: 0 for n in free}
        for n in free:
            for b in B[n]: allb[n] |= b
        nb = {n: [m for m in free if m != n and allb[m] & allb[n]] for n in free}
        for t in range(tries):
            use = dict(base); mp = {}; budget = [400]
            fits = lambda n, r: not any(use.get(r + i, 0) & b for i, b in enumerate(B[n]))
            pri = {n: rng.random() for n in free}
            def dfs(cands):
                if not cands: return True
                budget[0] -= 1
                if budget[0] < 0: return False
                n = min(cands, key=lambda m: (len(cands[m]) / (self.size[m] ** 0.5), pri[m]))
                cs = list(cands[n])
                if t % 2: cs.reverse()
                if t % 3 == 2: rng.shuffle(cs)
                cs.sort(key=lambda r: (r % 4 != 0) if self.size[n] >= 4 else 0)
                for r in cs:
                    for i, b in enumerate(B[n]): use[r + i] = use.get(r + i, 0) | b
                    nc = {}; ok = True
                    for m in cands:
                        if m == n: continue
                        c = [x for x in cands[m] if fits(m, x)] if allb[m] & allb[n] else cands[m]
                        if not c: ok = False; break
                        nc[m] = c
                    if ok:
                        mp[n] = r
                        if dfs(nc): return True
                    for i, b in enumerate(B[n]): use[r + i] &= ~b
                    if budget[0] < 0: return False
                return False
            if dfs({n: [r for r in cand0[n] if fits(n, r)] for n in free}):
                self.map = dict(self.pin); self.map.update(mp)
                return self.map
        inpool = lambda e: e[0] not in self.pin or (self.pin[e[0]] + e[1]) in poolset
        cnt = [sum(1 for e, b in bits.items() if (b >> p) & 1 and inpool(e)) for p in range(2 * N)]
        for q in range(N): print(max(cnt[2*q], cnt[2*q+1]), lines[q])
        p = max(range(2 * N), key=lambda q: cnt[q])
        raise RuntimeError(f'alloc failed; peak {cnt[p]} at "{lines[p//2]}" live: ' + ' '.join(sorted(set(e[0] for e, b in bits.items() if (b >> p) & 1 and inpool(e)))))
    def sub(self, lines):
        def rep(m):
            n = m.group(1); r = self.map[n] if n in self.map else self.pin[n]
            if m.group(2) is None:
                sz = self.size[n]
                return f'v{r}' if sz == 1 else f'v[{r}:{r+sz-1}]'
            if m.group(3) is None: return f'v{r+int(m.group(2))}'
            return f'v[{r+int(m.group(2))}:{r+int(m.group(3))}]'
        return [VTOK.sub(rep, ln) for ln in lines if not ln.startswith(('@use', '@def'))]

def pregs(s):
    out = set()
    for m in PTOK.finditer(s):
        k = m.group(1)
        if m.group(2) is not None: out.add((k, int(m.group(2))))
        else:
            for i in range(int(m.group(3)), int(m.group(4)) + 1): out.add((k, i))
    if re.search(r'\bvcc\b', s): out.add(('s', 'vcc'))
    if re.search(r'\bm0\b', s): out.add(('s', 'm0'))
    if re.search(r'\bexec\b', s): out.add(('s', 'exec'))
    return out

TRANS = ('v_exp_', 'v_log_', 'v_rcp_', 'v_rsq_', 'v_sqrt_', 'v_sin_', 'v_cos_')
def passes(op):
    if '32x32' in op: return 8
    if '16x16' in op: return 4
    raise ValueError(op)

class Ins:
    def __init__(self, line):
        self.line = line
        self.op, d, u = classify(line)
        op = self.op
        self.label = line.endswith(':') or op.startswith('.')
        self.d = set().union(*[pregs(x) for x in d]) if d else set()
        self.u = set().union(*[pregs(x) for x in u]) if u else set()
        self.mfma = op.startswith(('v_mfma', 'v_smfmac'))
        self.valu = op.startswith('v_') and not self.mfma
        self.vmem = op.startswith(('buffer_', 'global_'))
        self.ds = op.startswith('ds_')
        self.salu = op.startswith('s_')
        self.trans = op.startswith(TRANS)
        _, ops = split_ops(line) if not self.label else (None, [])
        self.ops = ops
        if self.mfma:
            self.ab = pregs(ops[1]) | pregs(ops[2])
            if op.startswith('v_smfmac'):
                self.c = pregs(ops[0]); self.ab |= pregs(ops[3].split()[0])
            else:
                self.c = pregs(ops[3].split()[0])
        if self.vmem and re.search(r'\blds\b', line): self.u.add(('s', 'm0'))
        self.slots = int(ops[0]) + 1 if op == 's_nop' else 1

def need(p, c):
    n = 0
    vec = lambda s: {x for x in s if x[0] != 's'}
    sca = lambda s: {x for x in s if x[0] == 's'}
    if p.mfma:
        P = passes(p.op); big = {4: 8, 8: 12}[P]
        if c.mfma:
            if p.d & c.ab: n = max(n, big)
            if p.d & c.c and not (p.d == c.c and passes(c.op) == P): n = max(n, {4: 6, 8: 10}[P])
            if p.d & c.d and not (p.d & c.c): n = max(n, big)
        elif (c.valu or c.vmem or c.ds) and (p.d & (c.u | c.d)): n = max(n, big)
        if c.valu and (p.c & c.d): n = max(n, {4: 3, 8: 7}[P])
    if p.valu:
        if c.mfma and (vec(p.d) & (c.ab | c.c)): n = max(n, 2)
        if c.valu and vec(p.d) & c.u:
            if 'dpp' in c.op or c.op.startswith('v_permlane'): n = max(n, 2)
            if c.op.startswith(('v_readlane', 'v_readfirstlane')): n = max(n, 1)
            if p.trans and not c.trans: n = max(n, 1)
            if 'sdwa' in p.op or 'op_sel' in p.line: n = max(n, 1)
        if sca(p.d) & c.u:
            if c.valu: n = max(n, 4 if c.op.startswith(('v_readlane', 'v_writelane', 'v_div_fmas')) else 2)
            if c.vmem: n = max(n, 5)
        if ('s', 'exec') in p.d and (c.mfma or c.valu): n = max(n, 5)
    if p.vmem and ('x3' in p.op or 'x4' in p.op) and 'store' in p.op and vec(p.u) & c.d: n = max(n, 2)
    if p.salu and ('s', 'm0') in p.d and ('s', 'm0') in c.u and c.vmem: n = max(n, 1)
    return n

def fix_hazards(lines, loop=False, timed=True, report=None):
    out = []
    ins = []
    def vhold(x):
        if x.op.startswith('v_smfmac'): return 3
        if x.mfma: return 2 if ('16x16x32' in x.op or '32x32x16' in x.op) else 1
        if x.trans or x.op.startswith('v_permlane'): return 2
        return 1
    def dist(i):
        t = 0; free = 0; vfree = 0
        for j in range(i, len(ins)):
            x = ins[j]
            if timed:
                if x.mfma: t = max(t, free); free = t + passes(x.op)
                if x.valu: t = max(t, vfree)
                if x.mfma or x.valu: vfree = t + vhold(x)
            t += x.slots
        return t, free, vfree
    def process(seq, emit):
        for ln in seq:
            c = Ins(ln)
            if c.label:
                if emit: out.append(ln)
                continue
            add = 0
            for i in range(max(0, len(ins) - 14), len(ins)):
                n = need(ins[i], c)
                if n:
                    t, free, vfree = dist(i)
                    tt = max(t, free) if c.mfma else (max(t, vfree) if c.valu else t)
                    if n <= 2 and i == len(ins) - 1: tt = t
                    if tt < n + 1: add = max(add, n + 1 - t)
            if add:
                if not emit: raise RuntimeError('hazard across back edge at ' + ln)
                if report is not None: report.append((add, ln))
                for x in nopl(add):
                    out.append(x); ins.append(Ins(x))
            if emit: out.append(ln)
            ins.append(c)
    process(lines, True)
    if loop:
        process([l for l in out[:40]], False)
    return out

def auto_waits(lines, loop=False):
    def one(seq, lq, vq):
        out = []
        for ln in seq:
            if ln.startswith('@ldsdone'):
                idx = [i for i, x in enumerate(lq) if x[0] == 'w']
                if idx:
                    n = len(lq) - 1 - idx[-1]
                    out.append(f's_waitcnt lgkmcnt({min(n,15)})'); lq = lq[len(lq) - min(n, 15):]
                continue
            if ln.startswith('@vmdone'):
                out.append('s_waitcnt vmcnt(0)'); vq = []; continue
            if ln.startswith('@mark'):
                if vq: vq[-1] = (vq[-1][0], vq[-1][1], vq[-1][2] | {ln.split()[1]})
                continue
            if ln.startswith('@waitmark'):
                idx = [i for i, x in enumerate(vq) if ln.split()[1] in x[2]]
                if idx:
                    n = len(vq) - 1 - idx[-1]
                    out.append(f's_waitcnt vmcnt({min(n,63)})'); vq = vq[len(vq) - min(n, 63):]
                continue
            c = Ins(ln)
            if c.label:
                out.append(ln); continue
            if c.op == 's_waitcnt':
                m = re.search(r'lgkmcnt\((\d+)\)', ln)
                if m: lq = lq[max(0, len(lq) - int(m.group(1))):]
                m = re.search(r'vmcnt\((\d+)\)', ln)
                if m: vq = vq[max(0, len(vq) - int(m.group(1))):]
                out.append(ln); continue
            if ';nowait' in ln:
                out.append(ln.replace(';nowait', '').strip()); continue
            touch = {x for x in (c.u | c.d) if x[0] != 's'}
            w = []
            usel = c.u if c.ds else touch
            usev = c.u if c.vmem else touch
            idx = [i for i, x in enumerate(vq) if x[1] & usev]
            if idx:
                n = min(len(vq) - 1 - idx[-1], 63); w.append(f'vmcnt({n})'); vq = vq[len(vq) - n:]
            idx = [i for i, x in enumerate(lq) if x[1] & usel]
            if idx:
                n = min(len(lq) - 1 - idx[-1], 15); w.append(f'lgkmcnt({n})'); lq = lq[len(lq) - n:]
            if w: out.append('s_waitcnt ' + ' '.join(w))
            if c.ds: lq = lq + [('r' if c.d else 'w', set(c.d), set())]
            if c.vmem: vq = vq + [('r' if c.d else 'w', set(c.d), set())]
            out.append(ln)
        return out, lq, vq
    out, lq, vq = one(lines, [], [])
    if loop:
        out, lq, vq = one(lines, list(lq), list(vq))
        out2, _, _ = one(lines, list(lq), list(vq))
        assert out == out2
    return out
```

```python
from asmlib import *
from layout import *
GEO = {'battn_kernel': (256, 512, 152064, 128, 0), 'bo0_kernel': (288, 256, 36864, 208, 0), 'bo1_kernel': (288, 256, 36864, 208, 0)}
LK, LR, LV = 0, 65536, 73728

def battn(cfg):
    p = Prog()
    sH_, sSEG = 's12', 's13'; T = [f's{i}' for i in range(14, 24)]
    ln, vL, vR, vV0, vV1, idx = 'v0', 'v1', 'v2', 'v3', 'v4', 'v5'
    QM = 'v[8:11]'; QR = ['v[12:13]', 'v[14:15]', 'v[16:17]', 'v[18:19]']
    O = 20; SB = [36, 52]; KB = [68, 72]; RB = [76, 78]; VB = [80, 84, 88, 92]
    tup = lambda r, n: f'v[{r}:{r+n-1}]'
    p('.p2align 8', 'battn_kernel:', 's_cmp_ge_u32 s2, 256', 's_cbranch_scc1 BA_exit', 's_load_dwordx2 s[4:5], s[0:1], 96', 'v_lshrrev_b32 v8, 6, v0', 'v_and_b32 v0, 63, v0')
    p(f's_and_b32 {sH_}, s2, 7', f's_lshl_b32 {sH_}, {sH_}, 2', f's_bfe_u32 {T[0]}, s2, 0x20003', f's_add_u32 {sH_}, {sH_}, {T[0]}', f'v_readfirstlane_b32 {sW}, v8', f's_lshr_b32 {sSEG}, s2, 5', f's_lshl_b32 {sSEG}, {sSEG}, 3', f's_add_u32 {sSEG}, {sSEG}, {sW}')
    p(f'v_lshlrev_b32 {vL}, 4, {ln}', 's_waitcnt lgkmcnt(0)', srd(8, 4, WS_BYTES))
    p(f's_lshl_b32 {T[0]}, {sH_}, 16', f's_lshl_b32 {T[1]}, {sSEG}, 10', f's_add_u32 {T[1]}, {T[1]}, {T[0]}', f's_add_u32 {T[1]}, {T[1]}, {WS_BQM}', f'buffer_load_dwordx4 {QM}, {vL}, {WS}, {T[1]} offen')
    p(f's_lshl_b32 {T[2]}, {sH_}, 13', f's_lshl_b32 {T[1]}, {sSEG}, 7', f's_add_u32 {T[1]}, {T[1]}, {T[2]}', f's_add_u32 {T[1]}, {T[1]}, {WS_BQR}', f'v_and_b32 v6, 31, {ln}', 'v_lshlrev_b32 v7, 2, v6', f'buffer_load_dword v19, v7, {WS}, {T[1]} offen')
    p(f's_lshl_b32 {T[3]}, {sW}, 10', f's_add_u32 {T[4]}, {sW}, 16', f's_min_u32 {T[4]}, {T[4]}, 18', f's_lshl_b32 {T[4]}, {T[4]}, 10')
    p(f's_add_u32 {T[0]}, {T[0]}, {WS_BKM}', f's_add_u32 {T[0]}, {T[0]}, {T[3]}', f's_add_u32 {T[2]}, {T[2]}, {WS_BKR}', f's_add_u32 {T[2]}, {T[2]}, {T[3]}')
    p(f's_mul_i32 {T[5]}, {sH_}, {BV_H}', f's_add_u32 {T[5]}, {T[5]}, {WS_BV}', f's_add_u32 {T[6]}, {T[5]}, {T[4]}', f's_add_u32 {T[5]}, {T[5]}, {T[3]}')
    dma = lambda lb, lo, gb, go: [f's_add_u32 m0, {lb}, {lo}', f's_add_u32 {T[7]}, {gb}, {go}', f'buffer_load_dwordx4 {vL}, {WS}, {T[7]} offen lds']
    p(dma(T[3], LR, T[2], 0))
    for c in range(4):
        for i in range(2): p(dma(T[3], LK + c*16384 + i*8192, T[0], c*16384 + i*8192))
        for i in range(2): p(dma(T[3], LV + c*19456 + i*8192, T[5], c*19456 + i*8192))
        p(dma(T[4], LV + c*19456, T[6], c*19456))
    p(f'v_lshlrev_b32 {vR}, 2, {ln}', f'v_add_u32 {vR}, {LR}, {vR}', f'v_lshrrev_b32 v7, 5, {ln}', 'v_mul_u32_u24 v7, 304, v7', 'v_lshl_add_u32 v7, v6, 4, v7', f'v_add_u32 {vV0}, {LV}, v7', f'v_add_u32 {vV1}, {LV + 32*1216}, v7', f'v_mov_b32 {idx}, 0xdddd')
    p([f'v_mov_b32 v{O+i}, 0' for i in range(16)], [f'v_mov_b32 v{i}, 0' for i in (13, 15, 16, 18)], f'v_cmp_gt_u32 vcc, 32, {ln}', 's_waitcnt vmcnt(21)')
    p('v_cndmask_b32 v12, 0, v19, vcc', 'v_cndmask_b32 v17, 0, v19, vcc', 'v_cndmask_b32 v19, v19, v13, vcc', 'v_mov_b32 v14, v19')
    rK = lambda t, a=vL: f'ds_read_b128 {tup(KB[t%2], 4)}, {a} offset:{LK + t*1024}'
    rR = lambda t, a=vR: f'ds_read2st64_b32 {tup(RB[(t//4)%2], 2)}, {a} offset0:{t//2} offset1:{t//2+1}'
    rV = lambda t, c: f'ds_read_b128 {tup(VB[(2*t+c)%4], 4)}, {vV0 if t < 32 else vV1} offset:{(t%32)*1216 + c*608}'
    mA = lambda t, C='0': f'v_mfma_f32_32x32x16_bf16 {tup(SB[t%2], 16)}, {tup(KB[t%2], 4)}, {QM}, {C}'
    mB = lambda t: f'v_mfma_f32_32x32x8_bf16 {tup(SB[t%2], 16)}, {tup(RB[(t//4)%2], 2)}, {QR[t%4]}, {tup(SB[t%2], 16)}'
    mP = lambda t, c: f'v_smfmac_f32_32x32x32_bf16 {tup(O, 16)}, {tup(VB[(2*t+c)%4], 4)}, {tup(SB[t%2]+8*c, 8)}, {idx}'
    ex = lambda t, a, b: [f'v_exp_f32 v{SB[t%2]+i}, v{SB[t%2]+i}' for i in range(a, b)]
    p('s_waitcnt vmcnt(15)', 's_barrier', rK(0), rR(0), rK(1), rV(0, 0), rV(0, 1), mA(0), mB(0))
    for t in range(64):
        nx = t + 1 < 64
        if t % 16 == 13 and t < 48: p(f's_waitcnt vmcnt({5*(2 - t//16)})', 's_barrier')
        p(ex(t, 0, 2), mP(t - 1, 1) if t else None, rV(t + 1, 0) if nx else None, ex(t, 2, 6))
        if nx: p(mA(t + 1), rK(t + 3) if False else None, rV(t + 1, 1))
        if t + 2 < 64: p(rK(t + 2))
        p(ex(t, 6, 10), mB(t + 1) if nx else None, rR(t + 3) if (t % 4 == 1 and t + 3 < 64) else None, ex(t, 10, 14), mP(t, 0), ex(t, 14, 16))
    p(mP(63, 1))
    norm = [f'v_mov_b32 v6, v{O+10}', f'v_mov_b32 v7, v{O+10}', 'v_permlane32_swap_b32 v6, v7', 'v_rcp_f32 v7, v6']
    p(norm, 'v_max_f32 v36, v6, v7', f'v_cmp_nge_f32 vcc, {f32bits(2.0**60)}, v36', 's_cbranch_vccnz BA_slow' if not cfg.get('forcefb') else 's_branch BA_slow', 'BA_out:')
    p([f'v_mul_f32 v{O+i}, v{O+i}, v7' for i in range(10)], [f'v_cvt_pk_bf16_f32 v{36+u}, v{O+2*u}, v{O+2*u+1}' for u in range(5)])
    p(f's_mul_i32 {T[0]}, {sSEG}, 36864', f's_add_u32 {T[0]}, {T[0]}, {WS_BO}', f's_lshl_b32 {T[1]}, {sH_}, 10', f's_add_u32 {T[1]}, {T[1]}, {T[0]}', f'buffer_store_dwordx4 v[36:39], {vL}, {WS}, {T[1]} offen')
    p(f's_lshr_b32 {T[1]}, {sH_}, 2', f's_lshl_b32 {T[1]}, {T[1]}, 9', f's_and_b32 {T[2]}, {sH_}, 3', f's_lshl_b32 {T[2]}, {T[2]}, 2', f's_add_u32 {T[1]}, {T[1]}, {T[2]}', f's_add_u32 {T[1]}, {T[1]}, {T[0]}', f's_add_u32 {T[1]}, {T[1]}, 32768')
    p('s_mov_b32 exec_hi, 0', f'buffer_store_dword v40, {vL}, {WS}, {T[1]} offen', 'BA_exit:', 's_endpgm')
    main = fix_hazards(auto_waits(p.lines))
    q = Prog()
    NM = 96
    a = ['v112', 'v113', 'v114']
    def pas(lbl, second):
        q(f'v_mov_b32 {a[0]}, {vL}', f'v_mov_b32 {a[1]}, {vR}', f'v_mov_b32 {a[2]}, {vV0}', f's_mov_b32 {T[8]}, 16', f'{lbl}:', rR(0, a[1]))
        for t in range(4):
            q(rK(t, a[0]))
            if second: q([f'ds_read_b128 {tup(VB[(2*t+c)%4], 4)}, {a[2]} offset:{t*1216 + c*608}' for c in range(2)])
            q('s_waitcnt lgkmcnt(0)', mA(t, tup(NM, 16) if second else '0'), mB(t))
            if second: q(ex(t, 0, 16), mP(t, 0), mP(t, 1))
            else: q([f'v_max3_f32 v6, v6, v{SB[t%2]+2*i}, v{SB[t%2]+2*i+1}' for i in range(8)])
        q(f'v_add_u32 {a[0]}, 4096, {a[0]}', f'v_add_u32 {a[1]}, 512, {a[1]}', f'v_add_u32 {a[2]}, {4*1216}, {a[2]}', f's_sub_u32 {T[8]}, {T[8]}, 1', f's_cmp_lg_u32 {T[8]}, 0', f's_cbranch_scc1 {lbl}', 's_nop 15')
    q('BA_slow:', 's_nop 15', 'v_mov_b32 v6, 0xff800000')
    pas('BA_p1', False)
    q('v_mov_b32 v7, v6', 'v_permlane32_swap_b32 v6, v7', 'v_max_f32 v6, v6, v7', [f'v_sub_f32 v{NM+i}, 0, v6' for i in range(16)], [f'v_mov_b32 v{O+i}, 0' for i in range(16)])
    pas('BA_p2', True)
    q(norm, 's_nop 1', 's_branch BA_out')
    return main + fix_hazards(q.lines, timed=False)

def bo(cfg):
    p = Prog()
    T = [f's{i}' for i in range(20, 30)]; sCT, sSEG = 's30', 's31'
    ln, vL, aM, aR, aT, vOut, t0, t1 = 'v0', 'v1', 'v2', 'v3', 'v4', 'v5', 'v6', 'v7'
    for l in (1, 0):
        p('.p2align 8', f'bo{l}_kernel:', f's_mov_b32 {sLAYER}, {l}', 's_branch BO_entry' if l else None)
    p('BO_entry:', 's_cmp_ge_u32 s2, 288', 's_cbranch_scc1 BO_exit', 's_load_dwordx4 s[4:7], s[0:1], 72', 's_load_dwordx2 s[34:35], s[0:1], 96', 'v_lshrrev_b32 v8, 6, v0', 'v_and_b32 v0, 63, v0')
    p(f's_mul_i32 {sSEG}, s2, 3641', f's_lshr_b32 {sSEG}, {sSEG}, 16', f'v_readfirstlane_b32 {sW}, v8', f's_mul_i32 {sCT}, {sSEG}, 18', f's_sub_u32 {sCT}, s2, {sCT}', f's_lshl_b32 {sSEG}, {sSEG}, 2', f's_add_u32 {sSEG}, {sSEG}, {sW}')
    b = lambda i, n, d: f'v_bfe_u32 {d}, {ln}, {i}, {n}'
    p(f'v_lshlrev_b32 {vL}, 4, {ln}', f's_lshl_b32 {T[0]}, {sCT}, 6', f'v_and_b32 {t1}, 3, {ln}', f'v_lshlrev_b32 {t1}, 4, {t1}', f'v_add_u32 {t1}, {T[0]}, {t1}')
    p(b(2, 2, aM), b(4, 1, t0), f'v_lshl_add_u32 {aM}, {t0}, 3, {aM}', b(5, 1, t0), f'v_lshl_add_u32 {aM}, {t0}, 2, {aM}', f'v_mul_u32_u24 {aM}, 1152, {aM}', f'v_add_u32 {aM}, {aM}, {t1}')
    p(b(3, 3, aR), f'v_mul_u32_u24 {aR}, 18, {aR}', b(2, 1, t0), f'v_add3_u32 {aR}, {aR}, {t0}, 16', f'v_mul_u32_u24 {aR}, 1152, {aR}', f'v_add_u32 {aR}, {aR}, {t1}')
    p('s_waitcnt lgkmcnt(0)', srd(8, 34, WS_BYTES), srd(12, 4, 576*1152))
    p(f's_add_u32 s36, s34, {WS_X2}', 's_addc_u32 s37, s35, 0', f's_cmp_eq_u32 {sLAYER}, 0', 's_cselect_b32 s36, s36, s6', 's_cselect_b32 s37, s37, s7', srd(16, 36, S*D*2))
    p(f's_lshl_b32 {T[1]}, {sW}, 10', f's_mul_i32 {T[2]}, {sW}, {18*1152}')
    for i in range(8): p(f's_add_u32 m0, {T[1]}, {i*4096}', f's_add_u32 {T[3]}, {T[2]}, {i*72*1152}', f'buffer_load_dwordx4 {aM}, s[12:15], {T[3]} offen lds')
    p(f's_add_u32 m0, {T[1]}, 32768', f's_lshl_b32 {T[3]}, {T[2]}, 3', f'buffer_load_dwordx4 {aR}, s[12:15], {T[3]} offen lds', '@mark w')
    p(f's_mul_i32 {T[4]}, {sSEG}, 36864', f's_add_u32 {T[5]}, {T[4]}, {WS_BO}')
    for j in range(36):
        p(f'buffer_load_dwordx4 v[{64+4*j}:{67+4*j}], {vL}, {WS}, {T[5]} offen offset:{(j%4)*1024}')
        if j % 4 == 3: p(f's_add_u32 {T[5]}, {T[5]}, 4096')
    p(f's_lshl_b32 {T[6]}, {sCT}, 11', f's_add_u32 {T[5]}, {T[4]}, {T[6]}', f's_add_u32 {T[5]}, {T[5]}, {WS_X1}')
    p([f'buffer_load_dwordx4 v[{24+4*c}:{27+4*c}], {vL}, {WS}, {T[5]} offen offset:{1024*c}' for c in range(2)])
    p(b(2, 2, aT), b(5, 1, t0), f'v_lshl_add_u32 {aT}, {t0}, 3, {aT}', f'v_lshlrev_b32 {aT}, 6, {aT}', b(4, 1, t1), f'v_lshl_add_u32 {aT}, {t1}, 5, {aT}', b(0, 1, t1), f'v_lshl_add_u32 {aT}, {t1}, 4, {aT}', b(1, 1, t1), f'v_lshl_add_u32 {aT}, {t1}, 3, {aT}')
    p(f'v_and_b32 {t1}, 31, {ln}', f'v_mul_u32_u24 {t1}, 1152, {t1}', f'v_lshl_add_u32 {t1}, {t0}, 4, {t1}', f'v_add_u32 {t1}, {T[0]}, {t1}', f'v_add_u32 {vOut}, {T[6]}, {vL}')
    p(f's_cmp_eq_u32 {sLAYER}, 0', 's_cselect_b64 vcc, -1, 0', f's_cselect_b32 {T[7]}, 1024, 32', f's_add_u32 {T[7]}, {T[7]}, {T[4]}', f'v_cndmask_b32 {vOut}, {t1}, {vOut}, vcc')
    p('@waitmark w', 's_barrier')
    NW = 6
    rd = lambda j: [f'ds_read_b64_tr_b16 v[{32+4*(j%NW)+2*i}:{33+4*(j%NW)+2*i}], {aT} offset:{(16*j+4*i)*64}' for i in range(2)]
    p([rd(j) for j in range(NW - 1)])
    for j in range(36):
        p(f'v_mfma_f32_32x32x16_bf16 v[8:23], v[{32+4*(j%NW)}:{35+4*(j%NW)}], v[{64+4*j}:{67+4*j}], {"v[8:23]" if j else 0}', rd(j + NW - 1) if j + NW - 1 < 36 else None)
    for u in range(8): p(f'v_lshlrev_b32 v{40+2*u}, 16, v{24+u}', f'v_and_b32 v{41+2*u}, 0xffff0000, v{24+u}')
    p([f'v_add_f32 v{8+i}, v{8+i}, v{40+i}' for i in range(16)], [f'v_cvt_pk_bf16_f32 v{24+u}, v{8+2*u}, v{9+2*u}' for u in range(8)])
    p(f'buffer_store_dwordx4 v[24:27], {vOut}, s[16:19], {T[4]} offen', f'buffer_store_dwordx4 v[28:31], {vOut}, s[16:19], {T[7]} offen', 'BO_exit:', 's_endpgm')
    return fix_hazards(auto_waits(p.lines))

def kernels(cfg):
    return battn(cfg) + bo(cfg)
```

```python
S, D, H, DH, M, SEG = 2048, 576, 32, 128, 8, 32
NSEG = 64
MB = 1 << 20
WS_RINGA = 1 * MB
RINGA_PAR = 0x48000
WS_RINGB = 2 * MB
RINGB_PAR = 0x4000
WS_FLAG = 3 * MB
WS_STAT = 3 * MB + 0x80000
WS_XN = 4 * MB
WS_X1 = 8 * MB
WS_X2 = 12 * MB
WS_KVM = 16 * MB
WS_KV = 32 * MB
WS_O = 64 * MB
WS_BQ = 80 * MB
WS_BYTES = 268435456
LOG2E = 1.4426950408889634
import struct
def f32bits(x): return '0x%08x' % struct.unpack('<I', struct.pack('<f', x))[0]
FL_ALIGN = WS_FLAG
FL_KV = WS_FLAG + 0x1000
FL_KM = WS_FLAG + 0x4000
FL_O = WS_FLAG + 0x6000
FL_X1 = WS_FLAG + 0x9000
FL_END = WS_FLAG + 0x10000
NQREP = 4
DBG = 's[4:7]'; WS = 's[8:11]'
sW, sH = 's32', 's33'
sLAYER, sSLOT = 's96', 's97'
SPIN = 400000
def srd(d, b, nbytes):
    return [f's_mov_b32 s{d}, s{b}', f's_mov_b32 s{d+1}, s{b+1}', f's_mov_b32 s{d+2}, {nbytes}', f's_mov_b32 s{d+3}, 0x00020000']
def poll_ge(lbl, srd_, soff, want, n=1, vt='v76', bud='s95', sleep=1):
    reg = vt if n == 1 else f'v[{vt[1:]}:{int(vt[1:])+n-1}]'
    r = int(vt[1:])
    out = [f'{lbl}:', f'buffer_load_dword{"" if n == 1 else "x%d" % n} {reg}, off, {srd_}, {soff} sc1', f's_sub_u32 {bud}, {bud}, 1', f's_cmp_eq_u32 {bud}, 0', 's_cbranch_scc1 L_end', 's_waitcnt vmcnt(0)']
    if n == 4: out += [f'v_min3_u32 v{r}, v{r}, v{r+1}, v{r+2}', f'v_min_u32 v{r}, v{r}, v{r+3}']
    out += [f'v_cmp_gt_u32 vcc, {want}, v{r}', f's_cbranch_vccz {lbl}_ok', f's_sleep {sleep}', f's_branch {lbl}', f'{lbl}_ok:']
    return out
WS_BQM = 80 * MB
WS_BKM = 82 * MB
WS_BQR = 84 * MB
WS_BKR = 84 * MB + 0x40000
WS_BV = 85 * MB
BV_H = 64 * 1216
WS_BO = 88 * MB
CB = LOG2E * 18 ** -0.5
WS_MEMO = 16 * MB
WS_SCR = 17 * MB
FL_XN = WS_FLAG + 0xC000
```

```python
from asmlib import *
from layout import *
from roleq import raw_dma, ln_src_setup, ln_code, LN_DECL, finish
SRD_O = 's[24:27]'; SRD_X = 's[28:31]'; SRD_W = 's[12:15]'
sG, sR, sTK, sSEG = 's34', 's35', 's36', 's37'
sT = ['s41', 's42', 's43', 's44', 's45', 's46']

def o_role(cfg, initwait):
    p = Prog()
    ln, t0, t1, t2, aD, aT = 'v60', 'v61', 'v62', 'v63', 'v64', 'v65'
    vA, vX, vY, vL = 'v1', 'v2', 'v3', 'v4'
    sHX = 's38'
    p(f'v_and_b32 {ln}, 63, v0', f's_mul_i32 {sT[0]}, {sW}, {1024*1152}', f's_lshl_b32 {sT[1]}, {sR}, 6', f's_add_u32 {sT[0]}, {sT[0]}, {sT[1]}')
    p(f'v_lshrrev_b32 {t0}, 2, {ln}', f'v_mul_u32_u24 {t0}, 1152, {t0}', f'v_and_b32 {t1}, 3, {ln}', f'v_lshlrev_b32 {t2}, 4, {t1}', f'v_add3_u32 {aD}, {t0}, {t2}, {sT[0]}')
    NS = 8
    p(f's_lshl_b32 {sT[2]}, {sW}, 15')
    def dma(n):
        out = []
        for i in range(4): out += [f's_add_u32 m0, {sT[2]}, {(n % NS)*4096 + i*1024}', f's_mov_b32 {sT[3]}, {(64*n + 16*i)*1152}', f'buffer_load_dwordx4 {aD}, {SRD_O}, {sT[3]} offen lds']
        return out
    for n in range(NS - 1): p(dma(n))
    p(f'v_bfe_u32 {t0}, {ln}, 2, 3', f'v_lshrrev_b32 {aT}, 5, {ln}', f'v_lshl_add_u32 {t0}, {aT}, 4, {t0}', f'v_lshlrev_b32 {t0}, 6, {t0}', f'v_add3_u32 {aT}, {t0}, {t2}, {sT[2]}')
    p(f'v_and_b32 {t0}, 15, {ln}', f'v_lshrrev_b32 {t1}, 4, {ln}', f'v_lshlrev_b32 {vA}, 4, {t0}', f'v_lshl_add_u32 {vA}, {t1}, 9, {vA}', f's_lshl_b32 {sT[0]}, {sR}, 11', f'v_add_u32 {vY}, {sT[0]}, {vA}')
    p(f'v_mul_u32_u24 {t0}, 1152, {t0}', f'v_lshlrev_b32 {t1}, 4, {t1}', f'v_add3_u32 {vX}, {t0}, {t1}, {sT[1]}', f's_mov_b32 {sHX}, 256', f's_cmp_eq_u32 {sLAYER}, 0', 's_cselect_b64 vcc, -1, 0')
    p(f's_cselect_b32 {sHX}, {16*1152}, {sHX}', f'v_cndmask_b32 {vX}, {vY}, {vX}, vcc', f'v_lshlrev_b32 {vL}, 4, {ln}')
    for n in range(16):
        p(f's_waitcnt vmcnt({4*(min(15, n + NS - 2) - n)})')
        for jj in range(2):
            for t in range(2):
                r = 8 * (2 * n + jj) + 4 * t
                for i in range(2): p(f'ds_read_b64_tr_b16 a[{r+2*i}:{r+2*i+1}], {aT} offset:{(n%NS)*4096 + (32*jj+8*i)*64 + 8*t}')
        if n + NS - 1 < 16: p('s_waitcnt lgkmcnt(8)' if n else None, dma(n + NS - 1))
    p('s_waitcnt lgkmcnt(0)', initwait, f's_mov_b32 {sTK}, {sG}')
    p('O_loop:', f's_lshr_b32 {sSEG}, {sTK}, 1', f's_and_b32 {sT[5]}, {sTK}, 1', f's_lshl_b32 {sT[0]}, {sSEG}, 7', f's_add_u32 {sT[4]}, {sT[0]}, {FL_X1}', f's_add_u32 {sT[0]}, {sT[0]}, {FL_O}')
    p(f's_lshl_b32 {sT[1]}, {sSEG}, 2', f's_add_u32 {sT[1]}, {sT[1]}, {sW}', f's_lshl_b32 {sT[1]}, {sT[1]}, 16', f's_lshl_b32 {sT[2]}, {sT[5]}, 8', f's_add_u32 {sT[1]}, {sT[1]}, {sT[2]}', f's_add_u32 {sT[1]}, {sT[1]}, {WS_O}')
    p(f's_mul_i32 {sT[3]}, {sSEG}, 36864', f's_add_u32 {sT[2]}, {sT[2]}, {sT[3]}', f's_add_u32 {sT[2]}, {sT[2]}, {WS_X1}', f's_mul_i32 {sT[5]}, {sT[5]}, {sHX}', f's_add_u32 {sT[3]}, {sT[3]}, {sT[5]}')
    p(f's_cmp_lg_u32 {sW}, 0', 's_cbranch_scc1 O_fl_ok', f'buffer_load_dwordx4 v[16:19], {vX}, {SRD_X}, {sT[3]} offen sc1')
    p(poll_ge('O_fl', WS, sT[0], 32, 1, 'v20') if not cfg.get('nowait') else ['O_fl_ok:'], 's_barrier')
    for n in range(32):
        p(f'buffer_load_dwordx4 v[{128+4*n}:{131+4*n}], {vA}, {WS}, {sT[1]} offen offset:{(n%2)*2048} sc1')
        if n % 2: p(f's_add_u32 {sT[1]}, {sT[1]}, 4096')
    for n in range(32):
        p(f's_waitcnt vmcnt({31-n})')
        for t in range(2): p(f'v_mfma_f32_16x16x32_bf16 v[{8+4*t}:{11+4*t}], a[{8*n+4*t}:{8*n+4*t+3}], v[{128+4*n}:{131+4*n}], {"v[%d:%d]" % (8+4*t, 11+4*t) if n else 0}')
    p(f's_cmp_eq_u32 {sW}, 0', 's_cbranch_scc1 O_w0', f's_lshl_b32 {sT[0]}, {sW}, 11', f'v_add_u32 v20, {sT[0]}, {vL}', 's_nop 4', 'ds_write_b128 v20, v[8:11]', 'ds_write_b128 v20, v[12:15] offset:1024', 's_waitcnt lgkmcnt(0)', 's_barrier', 's_branch O_next')
    p('O_w0:', [f'v_lshlrev_b32 v{48+2*i}, 16, v{16+i}' for i in range(4)], [f'v_and_b32 v{49+2*i}, 0xffff0000, v{16+i}' for i in range(4)], [f'v_add_f32 v{8+i}, v{8+i}, v{48+i}' for i in range(8)], 's_barrier')
    for k in range(6): p(f'ds_read_b128 v[{24+4*k}:{27+4*k}], {vL} offset:{2048 + 1024*k}')
    for k in range(3):
        p(f's_waitcnt lgkmcnt({4-2*k})', [f'v_add_f32 v{8+i}, v{8+i}, v{24+8*k+i}' for i in range(8)])
    p([f'v_cvt_pk_bf16_f32 v{16+i}, v{8+2*i}, v{9+2*i}' for i in range(4)], f'buffer_store_dwordx4 v[16:19], {vY}, {WS}, {sT[2]} offen sc1', 'v_mov_b32 v20, 1', 's_waitcnt vmcnt(0)')
    p('s_mov_b64 exec, 1', f'buffer_atomic_add v20, off, {WS}, {sT[4]}', 's_mov_b64 exec, -1')
    p('O_next:', f's_add_u32 {sTK}, {sTK}, 3', f's_cmp_lt_u32 {sTK}, 128', 's_cbranch_scc1 O_loop', 's_branch L_end')
    return fix_hazards(p.lines, timed=False)

def b_role(cfg, initwait):
    RAW, XN = 0, 36864
    PIN = dict(vL=0, vX=1, vXN=2, vO=3); SIZES = dict(vL=1, vX=1, vXN=1, vO=1)
    sTY, sTI, sX8, sRAWB, sSC, sONE, sOB, sOS = 's38', 's39', 's40', 's47', 's48', 's49', 's50', 's51'
    p = Prog()
    ln, t0, t1, t2, aD, aT = 'v60', 'v61', 'v62', 'v63', 'v64', 'v65'
    p(f'v_and_b32 {ln}, 63, v0', f's_sub_u32 {sTI}, {sR}, 18', f's_lshl_b32 {sTI}, {sTI}, 2', f's_add_u32 {sTI}, {sTI}, {sW}', f's_mul_i32 {sTY}, {sTI}, 3641', f's_lshr_b32 {sTY}, {sTY}, 16', f's_mul_i32 {sT[0]}, {sTY}, 18', f's_sub_u32 {sTI}, {sTI}, {sT[0]}')
    kind = 's52'
    p(f's_cmp_ge_u32 {sTI}, 16', f's_cselect_b32 {kind}, 1, 0', f's_cmp_ge_u32 {sTY}, 2', f's_cselect_b32 {kind}, {sTY}, {kind}')
    p(f's_mul_i32 {sT[0]}, {sTI}, 72', f's_mov_b32 {sT[1]}, 8', f's_mov_b32 {sT[2]}, 8', f's_cmp_eq_u32 {kind}, 0', 's_cbranch_scc1 B_k0')
    p(f's_lshl_b32 {sT[0]}, {sTI}, 6', f's_mov_b32 {sT[2]}, 0', f's_cmp_eq_u32 {kind}, 1', 's_cbranch_scc0 B_k0')
    p(f's_sub_u32 {sT[0]}, {sTI}, 16', f's_mul_i32 {sT[0]}, {sT[0]}, 576', f's_add_u32 {sT[0]}, {sT[0]}, 32', f's_mov_b32 {sT[1]}, 72', 'B_k0:')
    p(f's_min_u32 {sT[3]}, {sTY}, 2', f's_mul_i32 {sT[3]}, {sT[3]}, 1152', f's_add_u32 {sT[0]}, {sT[0]}, {sT[3]}')
    p(f'v_and_b32 {t0}, 7, {ln}', f'v_mul_lo_u32 {aD}, {t0}, {sT[1]}', f'v_lshrrev_b32 {t0}, 2, {t0}', f'v_mul_lo_u32 {t0}, {t0}, {sT[2]}', f'v_add3_u32 {aD}, {aD}, {t0}, {sT[0]}', f'v_lshrrev_b32 {t0}, 3, {ln}', f'v_mul_u32_u24 {t0}, 3456, {t0}', f'v_add_u32 {aD}, {aD}, {t0}')
    p(f's_mul_i32 {sT[2]}, {sW}, 36864', f'v_lshlrev_b32 {t2}, 3, {ln}', f'v_add_u32 {t2}, {sT[2]}, {t2}')
    p(f'v_bfe_u32 {t0}, {ln}, 2, 2', f'v_lshrrev_b32 {t1}, 5, {ln}', f'v_lshl_add_u32 {t0}, {t1}, 3, {t0}', f'v_lshlrev_b32 {t0}, 6, {t0}', f'v_bfe_u32 {t1}, {ln}, 4, 1', f'v_lshl_add_u32 {t0}, {t1}, 5, {t0}', f'v_and_b32 {t1}, 3, {ln}', f'v_lshlrev_b32 {t1}, 3, {t1}', f'v_add3_u32 {aT}, {t0}, {t1}, {sT[2]}')
    for half in range(2):
        for n in range(36 * half, 36 * half + 36): p(f's_mov_b32 {sT[3]}, {8*n*3456}', f'buffer_load_dwordx2 v[{100+2*n}:{101+2*n}], {aD}, {SRD_W}, {sT[3]} offen')
        if half == 0: p('s_waitcnt vmcnt(20)')
    for n in range(72): p(f's_waitcnt vmcnt({71-n})' if n >= 16 else None, f'ds_write_b64 {t2}, v[{100+2*n}:{101+2*n}] offset:{512*n}')
    p('s_waitcnt lgkmcnt(0)')
    for j in range(36):
        for i in range(2): p(f'ds_read_b64_tr_b16 a[{4*j+2*i}:{4*j+2*i+1}], {aT} offset:{(16*j+4*i)*64}')
    ln_src_setup(p, ln, 'v1', 'v2', sX8, sRAWB, XN, False, t0, t1, sT[0], sT[1])
    p(f'v_add_u32 v1, {WS_X1}, v1', f's_mov_b32 {sONE}, 0x3f803f80', f's_cmp_eq_u32 {sTY}, 0', f's_cselect_b32 {sSC}, {f32bits(CB)}, 1.0')
    p(f'v_and_b32 {t0}, 31, {ln}', f'v_and_b32 {t1}, 19, {ln}', f'v_bfe_u32 {t2}, {ln}, 2, 1', f'v_lshl_add_u32 {t1}, {t2}, 3, {t1}', f'v_bfe_u32 {t2}, {ln}, 3, 1', f'v_lshl_add_u32 {t1}, {t2}, 2, {t1}')
    p(f's_cmp_eq_u32 {sTY}, 1', 's_cselect_b64 vcc, -1, 0', f'v_lshrrev_b32 {t2}, 5, {ln}', f'v_cndmask_b32 {t1}, {t0}, {t1}, vcc')
    p(f's_cmp_eq_u32 {kind}, 0', 's_cbranch_scc0 B_a1')
    p(f'v_lshlrev_b32 v3, 4, {t1}', f'v_lshl_add_u32 v3, {t2}, 9, v3', f's_lshl_b32 {sOB}, {sTI}, 17', f's_lshl_b32 {sT[0]}, {sTY}, 21', f's_add_u32 {sOB}, {sOB}, {sT[0]}', f's_add_u32 {sOB}, {sOB}, {WS_BQM}', f's_mov_b32 {sOS}, 1024', 's_branch B_ad')
    p('B_a1:', f's_cmp_eq_u32 {kind}, 1', 's_cbranch_scc0 B_a2')
    p(f'v_lshlrev_b32 v3, 2, {t1}', f'v_lshl_add_u32 v3, {t2}, 14, v3', f's_sub_u32 {sOB}, {sTI}, 16', f's_lshl_b32 {sOB}, {sOB}, 17', f's_lshl_b32 {sT[0]}, {sTY}, 18', f's_add_u32 {sOB}, {sOB}, {sT[0]}', f's_add_u32 {sOB}, {sOB}, {WS_BQR}', f's_mov_b32 {sOS}, 128', 's_branch B_ad')
    p('B_a2:', f's_lshl_b32 {sT[0]}, {sTI}, 5', f'v_add_u32 {t1}, {sT[0]}, {t0}', f'v_mul_u32_u24 {aD}, 3641, {t1}', f'v_lshrrev_b32 {aD}, 16, {aD}', f'v_mul_u32_u24 {aT}, 18, {aD}', f'v_sub_u32 {t1}, {t1}, {aT}')
    p(f's_cmp_eq_u32 {kind}, 3', 's_cselect_b64 vcc, -1, 0', 's_nop 0', f'v_cndmask_b32 {aD}, {aD}, {t0}, vcc', f'v_mov_b32 {aT}, 18', f'v_cndmask_b32 {t1}, {t1}, {aT}, vcc')
    p(f'v_mul_u32_u24 v3, {BV_H}, {aD}', f'v_lshl_add_u32 v3, {t1}, 4, v3', f'v_mul_u32_u24 {t2}, 304, {t2}', f'v_add_u32 v3, v3, {t2}', f's_mov_b32 {sOB}, {WS_BV}', f's_mov_b32 {sOS}, 1216', 'B_ad:')
    p(f'v_lshlrev_b32 v0, 4, {ln}', 's_waitcnt lgkmcnt(0)', initwait, f's_mov_b32 {sSEG}, {sG}')
    pro = fix_hazards(p.lines, timed=False)
    p = Prog()
    p('B_loop:', f's_lshl_b32 {sT[0]}, {sSEG}, 7', f's_add_u32 {sT[0]}, {sT[0]}, {FL_X1}', f's_cmp_lg_u32 {sW}, 0', 's_cbranch_scc1 B_fl_ok')
    p(poll_ge('B_fl', WS, sT[0], 36, 1, 'v4') if not cfg.get('nowait') else ['B_fl_ok:'], 's_barrier')
    p(raw_dma('%vX', sSEG, sT[0], WS, sX8, sRAWB), 's_waitcnt vmcnt(0)')
    ln_code(p, sRAWB, sONE)
    p('@ldsdone', 's_barrier', f's_mul_i32 {sT[0]}, {sSEG}, {sOS}', f's_add_u32 {sT[0]}, {sT[0]}, {sOB}', f'v_add_u32 %xa, {XN}, %vL', '@use %xa')
    head = finish(p, dict(PIN, xa=5), dict(SIZES, xa=1), LN_DECL, list(range(8, 80)))
    def gemm(vmode):
        q = Prog(); NW = 6
        rd = lambda j: f'ds_read_b128 v[{32+4*(j%NW)}:{35+4*(j%NW)}], v5 offset:{j*1024}'
        q([rd(j) for j in range(NW - 1)])
        for j in range(36):
            f = f'v[{32+4*(j%NW)}:{35+4*(j%NW)}]'; w_ = f'a[{4*j}:{4*j+3}]'
            q(f'v_mfma_f32_32x32x16_bf16 v[8:23], {f if vmode else w_}, {w_ if vmode else f}, {"v[8:23]" if j else 0}', rd(j + NW - 1) if j + NW - 1 < 36 else None)
        if not vmode: q([f'v_mul_f32 v{8+i}, {sSC}, v{8+i}' for i in range(16)])
        q([f'v_cvt_pk_bf16_f32 v{24+u}, v{8+2*u}, v{9+2*u}' for u in range(8)])
        return fix_hazards(auto_waits(q.lines))
    p = Prog()
    st = cfg.get('bst', '')
    p(f's_cmp_ge_u32 {kind}, 2', 's_cbranch_scc1 B_v', gemm(False), f's_cmp_eq_u32 {kind}, 1', 's_cbranch_scc1 B_rem')
    p(f'buffer_store_dwordx4 v[24:27], v3, {WS}, {sT[0]} offen {st}', f's_add_u32 {sT[0]}, {sT[0]}, 65536', f'buffer_store_dwordx4 v[28:31], v3, {WS}, {sT[0]} offen {st}', 's_branch B_next', 'B_rem:')
    for a in range(4):
        for d in range(2): p(f's_add_u32 {sT[1]}, {sT[0]}, {(4*a+d)*8192}', f'buffer_store_dword v{24+2*a+d}, v3, {WS}, {sT[1]} offen {st}')
    p('s_branch B_next', 'B_v:', [f'v_mov_b32 v{24+u}, {sONE}' for u in range(8)], f's_cmp_eq_u32 {kind}, 3', 's_cbranch_scc1 B_vs', gemm(True), 'B_vs:')
    p(f'buffer_store_dwordx4 v[24:27], v3, {WS}, {sT[0]} offen {st}', f'buffer_store_dwordx4 v[28:31], v3, {WS}, {sT[0]} offen offset:608 {st}')
    p('B_next:', f's_add_u32 {sSEG}, {sSEG}, 3', f's_cmp_lt_u32 {sSEG}, {NSEG}', 's_cbranch_scc1 B_loop', 's_branch L_end')
    return pro + head + p.lines

if __name__ == '__main__':
    print(len(o_role({}, [])), len(b_role({}, [])))
```

```python
from asmlib import *
from layout import *
SRD = {'q': 's[12:15]', 'k': 's[16:19]', 'v': 's[20:23]'}; SRD_X = 's[28:31]'
RAW, XN, PARK, KVMS = 0, 36864, 73728, 122880
sJ, sSEG, sPREV, sC, sX8, sRAWB, sBUF = 's34', 's35', 's36', 's37', 's38', 's39', 's40'
sT = ['s41', 's42', 's43', 's44', 's45', 's46']
sONE = 's47'
MASK0 = 48
PIN = dict(vL=0, vX=1, vXN=2, vK=3, vV=4, vKM=8, vVM=9, vNEG=10)
SIZES = dict(vL=1, vX=1, vXN=1, vK=1, vV=4, vKM=1, vVM=1, vNEG=1)
def wreg(m, j):
    n = 3 * j + 'qkv'.index(m)
    return ('a', 4 * n) if n < 64 else ('v', 80 + 4 * (n - 64))
def wop(m, j):
    k, r = wreg(m, j); return f'{k}[{r}:{r+3}]'

def raw_dma(vX, seg, tmp, srd_, x8, rawb):
    out = [f's_mul_i32 {tmp}, {seg}, 36864']
    for i in range(9):
        out += [f's_add_u32 m0, {rawb}, {i*1024}', f's_add_u32 {tmp}, {tmp}, {x8}' if i else 's_nop 0', f'buffer_load_dwordx4 {vX}, {srd_}, {tmp} offen sc1 lds']
    return out

def ln_src_setup(p, ln, vX, vXN, x8, rawb, xnbase, rowmajor_if_layer0, t0, t1, sa, sb):
    if rowmajor_if_layer0:
        p(f's_cmp_eq_u32 {sLAYER}, 0', f's_cselect_b32 {sa}, 1152, 16', f's_cselect_b32 {sb}, 16, 512')
    else:
        p(f's_mov_b32 {sa}, 16', f's_mov_b32 {sb}, 512')
    p(f's_lshl_b32 {x8}, {sb}, 3', f's_mul_i32 {rawb}, {sW}, 9216')
    p(f'v_and_b32 {t0}, 7, {ln}', f'v_lshl_add_u32 {t0}, {sW}, 3, {t0}', f'v_lshrrev_b32 {t1}, 3, {ln}')
    p(f'v_mul_lo_u32 {vX}, {t0}, {sa}', f'v_lshlrev_b32 {t0}, 4, {t0}', f'v_lshl_add_u32 {t0}, {t1}, 9, {t0}', f'v_add_u32 {vXN}, {xnbase}, {t0}', f'v_mul_lo_u32 {t1}, {t1}, {sb}', f'v_add_u32 {vX}, {vX}, {t1}')

def ln_code(p, rawb, one, after_reads=()):
    p(f'v_add_u32 %ra, {rawb}, %vL')
    for i in range(9): p(f'ds_read_b128 %x[{4*i}:{4*i+3}], %ra offset:{i*1024}')
    p('v_mov_b32 %su, 0', 'v_mov_b32 %sq, 0')
    for i in range(36):
        p(f'v_dot2_f32_bf16 %su, %x[{i}], {one}, %su', f'v_dot2_f32_bf16 %sq, %x[{i}], %x[{i}], %sq')
        if i == 33: p(after_reads)
    p('s_nop 2')
    for r in ('su', 'sq'): p(f'v_add_f32_dpp %{r}, %{r}, %{r} row_ror:8 row_mask:0xf bank_mask:0xf')
    for sw in ('16', '32'):
        p('v_mov_b32 %t0, %su', 'v_mov_b32 %t1, %sq', f'v_permlane{sw}_swap_b32 %su, %t0', f'v_permlane{sw}_swap_b32 %sq, %t1', 'v_add_f32 %su, %su, %t0', 'v_add_f32 %sq, %sq, %t1')
    p(f'v_mul_f32 %su, {f32bits(1/576)}, %su', f'v_mul_f32 %sq, {f32bits(1/576)}, %sq', 'v_fma_f32 %sq, -%su, %su, %sq', 'v_max_f32 %sq, 0, %sq', f'v_add_f32 %sq, {f32bits(1e-5)}, %sq')
    p('v_rsq_f32 %rb[0], %sq', 'v_mul_f32 %rb[1], %su, %rb[0]')
    for i in range(36):
        y = f'y{i % 2}'
        p(f'v_lshlrev_b32 %{y}[0], 16, %x[{i}]', f'v_and_b32 %{y}[1], 0xffff0000, %x[{i}]', f'v_pk_fma_f32 %{y}, %{y}, %rb, %rb op_sel:[0,0,1] op_sel_hi:[1,0,1] neg_lo:[0,0,1] neg_hi:[0,0,1]',
          f'v_cvt_pk_bf16_f32 %x[{i}], %{y}[0], %{y}[1]')
        if i % 4 == 3: p(f'ds_write_b128 %vXN, %x[{i-3}:{i}] offset:{(i//4)*4096}')
LN_DECL = dict(x=36, ra=1, su=1, sq=1, t0=1, t1=1, rb=2, y0=2, y1=2)

def finish(p, pin, sizes, decl, pool):
    al = Alloc(pool, pin); al.decl(**sizes); al.decl(**decl)
    al.run(p.lines, loop=False)
    extra = {e[0] for e in al.livein} - set(pin)
    assert not extra, extra
    return fix_hazards(auto_waits(al.sub(p.lines)))

def prologue():
    p = Prog()
    P = {k: f'v{v}' for k, v in PIN.items()}
    ln, t0, t1, t2, aD, aT, aTV = 'v60', 'v61', 'v62', 'v63', 'v64', 'v65', 'v66'
    p(f's_sub_u32 {sJ}, {sSLOT}, 32', f's_lshr_b32 {sH}, {sJ}, 2', f's_and_b32 {sJ}, {sJ}, 3', f'v_and_b32 {ln}, 63, v0')
    ln_src_setup(p, ln, P['vX'], P['vXN'], sX8, sRAWB, XN, True, t0, t1, sT[0], sT[1])
    p(raw_dma(P['vX'], sJ, sT[0], SRD_X, sX8, sRAWB))
    p(f's_lshl_b32 {sT[0]}, {sH}, 8', f's_lshl_b32 {sT[1]}, {sW}, 6', f's_add_u32 {sT[0]}, {sT[0]}, {sT[1]}')
    p(f'v_lshrrev_b32 {t0}, 2, {ln}', f'v_lshlrev_b32 {t0}, 13, {t0}', f'v_and_b32 {t1}, 3, {ln}', f'v_lshlrev_b32 {t2}, 4, {t1}', f'v_add3_u32 {aD}, {t0}, {t2}, {sT[0]}')
    NS = 7
    p(f's_mul_i32 {sT[2]}, {sW}, {NS*4096}', f's_add_u32 {sT[2]}, {sT[2]}, {XN}')
    units = [(m, u) for u in range(9) for m in 'kvq']
    def dma(n):
        m, u = units[n]; out = []
        for i in range(4):
            out += [f's_add_u32 m0, {sT[2]}, {(n % NS)*4096 + i*1024}', f's_mov_b32 {sT[3]}, {(64*u + 16*i)*8192}', f'buffer_load_dwordx4 {aD}, {SRD[m]}, {sT[3]} offen lds']
        return out
    for n in range(NS - 1): p(dma(n))
    p(f'v_bfe_u32 {t0}, {ln}, 2, 2', f'v_lshrrev_b32 {t2}, 5, {ln}', f'v_lshl_add_u32 {t0}, {t2}, 3, {t0}', f'v_lshlrev_b32 {t0}, 6, {t0}', f'v_add_u32 {t0}, {sT[2]}, {t0}')
    p(f'v_bfe_u32 {t2}, {ln}, 4, 1', f'v_lshl_add_u32 {aTV}, {t2}, 5, {t0}', f'v_lshl_add_u32 {aTV}, {t1}, 3, {aTV}')
    p(f'v_lshl_add_u32 {aT}, {t2}, 4, {t0}', f'v_and_b32 {t2}, 2, {ln}', f'v_lshl_add_u32 {aT}, {t2}, 4, {aT}', f'v_and_b32 {t2}, 1, {ln}', f'v_lshl_add_u32 {aT}, {t2}, 3, {aT}')
    b = lambda i, d: f'v_bfe_u32 {d}, {ln}, {i}, 1'
    vK = P['vK']
    p(b(1, t0), f'v_lshlrev_b32 {vK}, 10, {t0}', b(4, t0), f'v_lshl_add_u32 {vK}, {t0}, 6, {vK}', b(3, t0), f'v_lshl_add_u32 {vK}, {t0}, 7, {vK}', b(2, t0), f'v_lshl_add_u32 {vK}, {t0}, 5, {vK}',
      b(0, t0), f'v_lshl_add_u32 {vK}, {t0}, 4, {vK}', b(5, t0), f'v_lshl_add_u32 {vK}, {t0}, 8, {vK}')
    p(f'v_and_b32 {t1}, 15, {ln}', f'v_lshl_add_u32 {t1}, {t0}, 4, {t1}', f'v_and_b32 {t2}, 16, {ln}', f'v_cmp_eq_u32 vcc, 0, {t2}')
    for c in range(2):
        p(f'v_add_u32 {t0}, {32*c}, {t1}', f'v_lshlrev_b32 {t2}, 3, {t0}', f'v_lshlrev_b32 {t0}, 4, {t0}')
        p(f'v_add_u32 v67, 2048, {t2}', f'v_add_u32 v68, 2568, {t0}', f'v_cndmask_b32 v{PIN["vV"]+2*c}, v68, v67, vcc')
        p(f'v_add_u32 v67, 2560, {t0}', f'v_add_u32 v68, 3584, {t2}', f'v_cndmask_b32 v{PIN["vV"]+2*c+1}, v68, v67, vcc')
    vKM, vVM = P['vKM'], P['vVM']
    p(b(0, t0), f'v_lshlrev_b32 {vKM}, 4, {t0}', b(1, t0), f'v_lshl_add_u32 {vKM}, {t0}, 7, {vKM}', b(2, t0), f'v_lshl_add_u32 {vKM}, {t0}, 6, {vKM}', b(5, t0), f'v_lshl_add_u32 {vKM}, {t0}, 8, {vKM}', f'v_add_u32 {vKM}, {KVMS+32}, {vKM}')
    p(f's_lshl_b32 {sT[0]}, {sW}, 11', f's_add_u32 {sT[0]}, {sT[0]}, {KVMS+1024}', f'v_lshlrev_b32 {vVM}, 8, {t0}', f'v_and_b32 {t1}, 15, {ln}', f'v_lshl_add_u32 {vVM}, {t1}, 3, {vVM}', b(4, t1), f'v_lshlrev_b32 {t1}, 2, {t1}', f'v_add3_u32 {vVM}, {vVM}, {t1}, {sT[0]}')
    p(f'v_and_b32 {t1}, 31, {ln}', f'v_lshlrev_b32 {t0}, 2, {t0}', f'v_sub_u32 {t1}, {t1}, {t0}')
    for i in range(16): p(f'v_cmp_le_i32 s[{MASK0+2*i}:{MASK0+2*i+1}], {8*(i//4)+i%4}, {t1}')
    p(f'v_mov_b32 {P["vNEG"]}, {f32bits(-1e9*LOG2E)}', f'v_lshlrev_b32 {P["vL"]}, 4, {ln}', f's_mov_b32 {sC}, {f32bits(LOG2E*DH**-0.5)}', f's_mov_b32 {sONE}, 0x3f803f80')
    for n, (m, u) in enumerate(units):
        p(f's_waitcnt vmcnt({4*(min(26, n + NS - 2) - n)})')
        for jj in range(4):
            k, r = wreg(m, 4 * u + jj)
            for i in range(2): p(f'ds_read_b64_tr_b16 {k}[{r+2*i}:{r+2*i+1}], {aTV if m == "v" else aT} offset:{(n%NS)*4096 + (16*jj+4*i)*64}')
        if n + NS - 1 < 27: p('s_waitcnt lgkmcnt(8)' if n else None, dma(n + NS - 1))
    p('s_waitcnt lgkmcnt(0)', f's_mov_b32 {sSEG}, {sJ}', f's_mov_b32 {sBUF}, {PARK}')
    return fix_hazards(p.lines, timed=False)

def gemm_part():
    p = Prog()
    p('s_waitcnt vmcnt(0)', f's_add_u32 {sT[1]}, {sSEG}, {NQREP}', f's_min_u32 {sT[1]}, {sT[1]}, {NSEG-1}')
    ln_code(p, sRAWB, sONE, raw_dma('%vX', sT[1], sT[0], SRD_X, sX8, sRAWB))
    p('@ldsdone', 's_barrier')
    NW = 4
    rd = lambda j: f'ds_read_b128 %f{j % NW}, %xa offset:{j*1024}'
    p(f'v_add_u32 %xa, {XN}, %vL', [rd(j) for j in range(NW - 1)])
    for j in range(36):
        c = lambda a: '0' if j == 0 else a
        p(f'v_mfma_f32_32x32x16_bf16 %ak, {wop("k", j)}, %f{j%NW}, {c("%ak")}', rd(j + NW - 1) if j + NW - 1 < 36 else None)
        p(f'v_mfma_f32_32x32x16_bf16 %av, %f{j%NW}, {wop("v", j)}, {c("%av")}', f'v_mfma_f32_32x32x16_bf16 %aq, {wop("q", j)}, %f{j%NW}, {c("%aq")}')
    p(f's_lshl_b32 {sT[0]}, {sSEG}, 5', f's_add_u32 {sT[0]}, {sT[0]}, {sH}', f's_lshl_b32 {sT[0]}, {sT[0]}, 2', f's_add_u32 {sT[0]}, {sT[0]}, {sW}', f's_lshl_b32 {sT[0]}, {sT[0]}, 12', f's_add_u32 {sT[0]}, {sT[0]}, {WS_KV}')
    p(f's_mul_i32 {sT[1]}, {sW}, 6144', f's_add_u32 {sT[1]}, {sT[1]}, {sBUF}', f'v_add_u32 %pa, {sT[1]}, %vL')
    for i in range(16): p(f'v_mul_f32 %ak[{i}], {sC}, %ak[{i}]')
    for a, off in (('k', 2048), ('v', 4096), ('q', 0)):
        for c in range(2):
            for u in range(4): p(f'v_cvt_pk_bf16_f32 %b{a}{c}[{u}], %a{a}[{8*c+2*u}], %a{a}[{8*c+2*u+1}]')
            if a == 'k': p(f'buffer_store_dwordx4 %bk{c}, %vK, {WS}, {sT[0]} offen offset:{512*c} sc1')
            if a == 'v': p([f'buffer_store_dwordx2 %bv{c}[{2*u2}:{2*u2+1}], %vV[{2*c+u2}], {WS}, {sT[0]} offen sc1' for u2 in range(2)])
            p(f'ds_write_b128 %pa, %b{a}{c} offset:{off + 1024*c}')
    p(f's_lshl_b32 {sT[0]}, {sH}, 6', f's_add_u32 {sT[0]}, {sT[0]}, {sSEG}', f's_lshl_b32 {sT[0]}, {sT[0]}, 2', f's_add_u32 {sT[0]}, {sT[0]}, {FL_KV}', 'v_mov_b32 %one, 1')
    p('s_waitcnt vmcnt(0) lgkmcnt(0)', 's_barrier', f's_cmp_lg_u32 {sW}, 0', 's_cbranch_scc1 Q_nf', 's_mov_b64 exec, 1', f'buffer_store_dword %one, off, {WS}, {sT[0]} sc1', 's_mov_b64 exec, -1', 'Q_nf:')
    return finish(p, PIN, SIZES, dict(LN_DECL, xa=1, pa=1, one=1, ak=16, av=16, aq=16, **{f'f{i}': 4 for i in range(NW)}, **{f'b{a}{c}': 4 for a in 'qkv' for c in range(2)}), list(range(11, 80)))

def attn_part(cfg):
    p = Prog()
    p(f's_xor_b32 {sT[5]}, {sBUF}, {PARK ^ (PARK+24576)}', f'v_add_u32 %pa, {sT[5]}, %vL')
    fr = [(w, c) for w in range(4) for c in range(2)]
    rq = lambda n: f'ds_read_b128 %q{n%3}, %pa offset:{fr[n][0]*6144 + fr[n][1]*1024}'
    rk = lambda n: f'ds_read_b128 %k{n%3}, %pa offset:{fr[n][0]*6144 + 2048 + fr[n][1]*1024}'
    rm = lambda n: f'ds_read_b128 %k{n%3}, %vKM offset:{fr[n][0]*2048 + fr[n][1]*512}'
    p(rq(0), rk(0), rq(1), rk(1))
    for n in range(8):
        if n < 6: p(rq(n + 2), rk(n + 2))
        p(f'v_mfma_f32_32x32x16_bf16 %sx, %k{n%3}, %q{n%3}, {"%sx" if n else 0}')
    for i in range(16): p(f'v_cndmask_b32 %sx[{i}], %vNEG, %sx[{i}], s[{MASK0+2*i}:{MASK0+2*i+1}]')
    p('v_max3_f32 %mx, %sx[0], %sx[1], %sx[2]', [f'v_max3_f32 %mx, %mx, %sx[{i}], %sx[{i+1}]' for i in range(3, 15, 2)], 'v_max_f32 %mx, %mx, %sx[15]')
    p(f's_lshl_b32 {sT[0]}, {sH}, 7', f's_add_u32 {sT[0]}, {sT[0]}, {FL_KM}', f's_add_u32 {sT[1]}, {sPREV}, 1')
    p(f's_lshl_b32 {sT[2]}, {sPREV}, 5', f's_add_u32 {sT[2]}, {sT[2]}, {sH}', f's_lshl_b32 {sT[2]}, {sT[2]}, 2', f's_add_u32 {sT[2]}, {sT[2]}, {sW}', f's_lshl_b32 {sT[2]}, {sT[2]}, 11')
    p(f's_add_u32 {sT[3]}, {sT[2]}, {WS_KVM}', f's_add_u32 {sT[2]}, {sT[2]}, {WS_O}', f's_lshl_b32 {sT[4]}, {sW}, 11', f's_add_u32 m0, {sT[4]}, {KVMS}')
    if not cfg.get('nowait'):
        p('@def %pl', f's_cmp_lg_u32 {sW}, 0', 's_cbranch_scc1 Q_km_ok', poll_ge('Q_km', WS, sT[0], sT[1], 1, 'v76'), 's_barrier', '@use %pl')
    p(f'buffer_load_dwordx4 %vL, {WS}, {sT[3]} offen sc1 lds', f'buffer_load_dwordx4 %vL, {WS}, {sT[3]} offen offset:1024 sc1 lds', rq(0), rq(1), 's_waitcnt vmcnt(0)', 's_barrier', rm(0), rm(1))
    for n in range(8):
        if n < 6: p(rq(n + 2), rm(n + 2))
        p(f'v_mfma_f32_32x32x16_bf16 %sm, %k{n%3}, %q{n%3}, {"%sm" if n else 0}')
    p(f's_mul_i32 {sT[4]}, {sW}, 6144', f'v_add_u32 %pa, {sT[4]}, %pa', 'ds_read_b128 %v0, %pa offset:4096', 'ds_read_b128 %v1, %pa offset:5120', 'ds_read2_b32 %vm, %vVM offset0:0 offset1:32')
    for i in range(4): p(f'v_mul_f32 %sm[{i}], {sC}, %sm[{i}]')
    p('v_max3_f32 %mx, %mx, %sm[0], %sm[1]', 'v_max3_f32 %mx, %mx, %sm[2], %sm[3]', 'v_mov_b32 %my, %mx', 'v_permlane32_swap_b32 %mx, %my', 'v_max_f32 %mx, %mx, %my')
    els = [f'%sm[{i}]' for i in range(4)] + [f'%sx[{i}]' for i in range(16)]
    for e in els: p(f'v_sub_f32 {e}, {e}, %mx')
    for e in els: p(f'v_exp_f32 {e}, {e}')
    p('v_cvt_pk_bf16_f32 %pm[0], %sm[0], %sm[1]', 'v_cvt_pk_bf16_f32 %pm[1], %sm[2], %sm[3]')
    for u in range(8): p(f'v_cvt_pk_bf16_f32 %px[{u}], %sx[{2*u}], %sx[{2*u+1}]')
    p('v_mfma_f32_32x32x8_bf16 %o, %vm, %pm, 0', 'v_add_f32 %l, %sm[0], %sm[1]', [f'v_add_f32 %l, %l, {e}' for e in els[2:8]], 'v_mfma_f32_32x32x16_bf16 %o, %v0, %px[0:3], %o',
      [f'v_add_f32 %l, %l, {e}' for e in els[8:14]], 'v_mfma_f32_32x32x16_bf16 %o, %v1, %px[4:7], %o', [f'v_add_f32 %l, %l, {e}' for e in els[14:]])
    p('v_mov_b32 %my, %l', 'v_permlane32_swap_b32 %l, %my', 'v_add_f32 %l, %l, %my', 'v_rcp_f32 %l, %l')
    for c in range(2):
        for i in range(8): p(f'v_mul_f32 %o[{8*c+i}], %o[{8*c+i}], %l')
        for u in range(4): p(f'v_cvt_pk_bf16_f32 %ob{c}[{u}], %o[{8*c+2*u}], %o[{8*c+2*u+1}]')
        p(f'buffer_store_dwordx4 %ob{c}, %vL, {WS}, {sT[2]} offen offset:{1024*c} sc1')
    p(f's_lshl_b32 {sT[0]}, {sPREV}, 7', f's_add_u32 {sT[0]}, {sT[0]}, {FL_O}', 'v_mov_b32 %one, 1')
    p('s_waitcnt vmcnt(0)', 's_barrier', f's_cmp_lg_u32 {sW}, 0', 's_cbranch_scc1 Q_no', 's_mov_b64 exec, 1', f'buffer_atomic_add %one, off, {WS}, {sT[0]}', 's_mov_b64 exec, -1', 'Q_no:')
    return finish(p, dict(PIN, pl=76), dict(SIZES, pl=1), dict(pa=1, sx=16, sm=16, mx=1, my=1, l=1, one=1, k0=4, k1=4, k2=4, v0=4, v1=4, vm=2, pm=2, px=8, o=16, ob0=4, ob1=4, **{f'q{i}': 4 for i in range(3)}), list(range(11, 80)))

def main_loop(cfg):
    p = Prog()
    p('Q_loop:', f's_cmp_ge_u32 {sSEG}, {NSEG}', 's_cbranch_scc1 Q_attn', gemm_part(), f's_cmp_lt_u32 {sSEG}, {NQREP}', 's_cbranch_scc1 Q_next')
    p('Q_attn:', f's_sub_u32 {sPREV}, {sSEG}, {NQREP}', attn_part(cfg), f's_cmp_ge_u32 {sSEG}, {NSEG}', 's_cbranch_scc1 L_end')
    p('Q_next:', f's_add_u32 {sSEG}, {sSEG}, {NQREP}', f's_xor_b32 {sBUF}, {sBUF}, {PARK ^ (PARK+24576)}', 's_branch Q_loop')
    return p.lines

if __name__ == '__main__':
    print(len(prologue()), len(gemm_part()), len(attn_part({})))
```

```python
from asmlib import *
from layout import *

LDS_W = 36864
LDS_X = 147456
L_MEM, L_SX, L_SM, L_O = 0, 9216, 13312, 14336

SRD = {'q': 's[12:15]', 'k': 's[16:19]', 'v': 's[20:23]', 'o': 's[24:27]'}; SRD_M = 's[28:31]'
sSTEP, sBUD, sTAG = 's34', 's35', 's36'
sA0, sA1, sA2, sAP, sB0, sB1, sB2 = 's37', 's38', 's39', 's40', 's41', 's42', 's43'
sKV, sKV8, sKM, sVM = 's44', 's45', 's46', 's47'
sC = 's48'; sAPO = 's49'; sEVEN = 's[50:51]'; sONE = 's[52:53]'
sT = ['s54', 's55', 's56', 's57', 's58', 's59']
sRETRY = 's60'; sM4 = 's[62:63]'; sMASK = 's61'; sM4T = 's[54:55]'; sBIG = 's3'; sFL = 's56'; sFV = 's[58:59]'; sKF = 's57'; sKFV = 's12'; sKMF = 's13'; sH4 = 's14'; sCONS = 's15'; sFB = 's16'
PIN = dict(selV=0, vW=1, vL=2, vL8=3, idx=4, aST=5, aST2=6, bST=7, bLD=8, oWR=9, selT=10, W=12, F8=28, F0=32, F1=36, F2=40, qk=44, va=60, kx0=68, kx1=72, vm=76)
WB = PIN['W']
SIZES = dict(vW=1, vL=1, vL8=1, idx=1, aST=1, aST2=1, bST=1, bLD=1, oWR=1, selT=2, selV=1, W=16, F8=4, F0=4, F1=4, F2=4, qk=16, va=8, kx0=4, kx1=4, vm=2)

def slot_ks(w, slot):
    if slot == 0: return w
    if slot == 1: return 4 + w
    if slot == 8: return 8
    if slot < 5: return (w + slot - 1) % 4
    return 4 + (w + slot - 4) % 4

LDS_UNITS = [('k', 0), ('v', 1), ('k', 3), ('q', 5), ('k', 8), ('v', 8), ('v', 5), ('o', 0, 0), ('o', 0, 3)]
ALL_UNITS = [(m, s) for s in range(9) for m in 'qkv'] + [('o', kk, p) for kk in range(2) for p in range(5)]
REG_UNITS = [u for u in ALL_UNITS if u not in LDS_UNITS]
ORDER = REG_UNITS + LDS_UNITS
LSLOT = {u: ORDER.index(u) % 9 for u in LDS_UNITS}
OPREG = {}
_n = 0
for u in REG_UNITS:
    for t in range(2):
        if u[0] == 'o' and u[2] == 4 and t == 1: continue
        OPREG[(u, t)] = ('a', 8 * _n) if _n < 32 else ('v', 80 + 8 * (_n - 32)); _n += 1
assert _n == 54

def opnd(u, t):
    if u in LDS_UNITS: return f'%W[{8*t}:{8*t+7}]'
    k, r = OPREG[(u, t)]
    return f'{k}[{r}:{r+7}]'
def wload(u, t):
    o = LSLOT[u] * 4096 + t * 2048
    return [f'ds_read_b128 %W[{8*t}:{8*t+3}], %vW offset:{o}', f'ds_read_b128 %W[{8*t+4}:{8*t+7}], %vW offset:{o+1024}']

def prologue(cfg, initwait):
    p = Prog()
    ln, n, g, t0, t1, t2 = 'v60', 'v61', 'v62', 'v63', 'v64', 'v65'
    aG, a8, aO, aTR = 'v66', 'v67', 'v68', 'v69'
    P = {k: f'v{v}' for k, v in PIN.items()}
    p(f'v_and_b32 {ln}, 63, v0', f'v_and_b32 {n}, 15, v0', f'v_lshrrev_b32 {g}, 4, {ln}')
    p(f'v_bfe_u32 v70, {ln}, 2, 1', f'v_bfe_u32 v71, {ln}, 3, 1', f'v_bfe_u32 v72, {ln}, 4, 1', f'v_bfe_u32 v73, {ln}, 5, 1')
    p(f'v_and_b32 {t0}, 3, {ln}', f'v_lshlrev_b32 {t0}, 4, {t0}')
    p(f's_lshl_b32 {sT[0]}, {sH}, 8', f's_lshl_b32 {sT[1]}, {sW}, 6', f's_add_u32 {sT[0]}, {sT[0]}, {sT[1]}')
    p(f'v_add_u32 {t1}, {sT[0]}, {t0}')
    p(f'v_lshlrev_b32 {t2}, 5, v72', f'v_lshl_add_u32 {t2}, v70, 4, {t2}', f'v_lshl_add_u32 {t2}, v71, 1, {t2}', f'v_add_u32 {t2}, {t2}, v73')
    p(f'v_lshl_add_u32 {aG}, {t2}, 13, {t1}')
    p(f'v_lshlrev_b32 {t2}, 3, v71', f'v_lshl_add_u32 {t2}, {g}, 1, {t2}', f'v_add_u32 {t2}, {t2}, v70')
    p(f'v_lshl_add_u32 {a8}, {t2}, 13, {t1}')
    p(f'v_lshlrev_b32 {t2}, 4, v70', f'v_lshl_add_u32 {t2}, v71, 2, {t2}', f'v_add_u32 {t2}, {t2}, {g}')
    p(f's_mul_i32 {sT[0]}, {sH}, {128*1152}', f's_mul_i32 {sT[1]}, {sW}, 288', f's_add_u32 {sT[0]}, {sT[0]}, {sT[1]}')
    p(f'v_mul_u32_u24 {t2}, 1152, {t2}', f'v_add3_u32 {aO}, {t2}, {t0}, {sT[0]}')
    p(f's_mul_i32 {sT[2]}, {sW}, {LDS_W}')
    p(f'v_lshrrev_b32 {t2}, 2, {n}', f'v_lshl_add_u32 {t2}, {g}, 3, {t2}', f'v_lshlrev_b32 {t2}, 6, {t2}', f'v_lshrrev_b32 {t0}, 1, {t0}', f'v_add3_u32 {aTR}, {t2}, {t0}, {sT[2]}')
    p(f'v_lshlrev_b32 {t0}, 4, {ln}', f'v_add_u32 {P["vW"]}, {sT[2]}, {t0}', f'v_add_u32 {P["vL"]}, {LDS_X}, {t0}', f'v_lshlrev_b32 {P["vL8"]}, 3, {ln}')
    for slot in range(9):
        if slot == 8: continue
        dw = {0: 0, 1: 0}.get(slot, slot - 1 if slot < 5 else slot - 4); G = 1 if (slot == 1 or slot >= 5) else 0
        p(f's_add_u32 s{64+slot}, {sW}, {dw}', f's_and_b32 s{64+slot}, s{64+slot}, 3', f's_mul_i32 s{64+slot}, s{64+slot}, {144*8192}')
        if G: p(f's_add_u32 s{64+slot}, s{64+slot}, {64*8192}')
    def dma(nu):
        u = ORDER[nu]; out = []
        for i in range(4):
            out.append(f's_add_u32 m0, {sT[2]}, {(nu % 9)*4096 + i*1024}')
            if u[0] == 'o':
                out.append(f's_mov_b32 {sT[3]}, {(64*u[1] + 32*(i//2) + 8*(i%2))*1152 + 64*u[2]}'); a = aO
            elif u[1] == 8:
                out.append(f's_mov_b32 {sT[3]}, {(144*i+128)*8192}'); a = a8
            else:
                out.append(f's_add_u32 {sT[3]}, s{64+u[1]}, {4*i*8192}'); a = aG
            out.append(f'buffer_load_dwordx4 {a}, {SRD[u[0]]}, {sT[3]} offen lds')
        return out
    for nu in range(8): p(dma(nu))
    p(f'v_and_b32 {t0}, 2, {ln}', f'v_cmp_eq_u32 vcc, 0, {t0}', f'v_mov_b32 {t1}, 0x5e5eeeee', f'v_mov_b32 {t2}, 0x04044444', f'v_cndmask_b32 {P["idx"]}, {t1}, {t2}, vcc')
    p(f's_lshl_b32 {sT[0]}, {sH}, 7')
    p(f'v_lshrrev_b32 {t0}, 3, v0', f'v_lshlrev_b32 {t0}, 12, {t0}', f'v_and_b32 {t1}, 7, {ln}', f'v_lshlrev_b32 {t1}, 4, {t1}', f'v_add3_u32 {P["aST"]}, {t0}, {t1}, {sT[0]}')
    p(f'v_lshrrev_b32 {t0}, 5, v0', f'v_lshlrev_b32 {t0}, 12, {t0}', f'v_and_b32 {t1}, 31, {ln}', f'v_lshlrev_b32 {t1}, 2, {t1}', f'v_add3_u32 {P["aST2"]}, {t0}, {t1}, {sT[0]}')
    p(f'v_lshrrev_b32 {t0}, 2, {n}', f'v_lshlrev_b32 {t0}, 8, {t0}', f'v_lshl_add_u32 {t0}, {g}, 6, {t0}', f'v_and_b32 {t1}, 3, {n}', f'v_lshl_add_u32 {P["bLD"]}, {t1}, 4, {t0}')
    p(f's_lshl_b32 {sT[1]}, {sW}, 12', f's_add_u32 {sT[0]}, {sT[0]}, {sT[1]}', f's_mov_b32 {sT[1]}, 6')
    p(f's_bfe_u32 {sT[4]}, {sH}, 0x10002', f's_lshl_b32 {sT[4]}, {sT[4]}, 9', f's_lshr_b32 {sT[5]}, {sH}, 3', f's_lshl_b32 {sT[5]}, {sT[5]}, 6', f's_add_u32 {sT[4]}, {sT[4]}, {sT[5]}', f's_add_u32 {sT[4]}, {sT[4]}, 8192')
    p(f's_cmp_lt_u32 {sW}, 2', f's_cselect_b32 {sT[0]}, {sT[0]}, {sT[4]}', f's_cselect_b32 {sT[1]}, {sT[1]}, 8')
    p(f'v_lshrrev_b32 {t0}, 2, {n}', f'v_lshlrev_b32 {t0}, {sT[1]}, {t0}', f'v_lshl_add_u32 {t0}, {g}, 4, {t0}', f'v_and_b32 {t1}, 2, {n}', f'v_lshl_add_u32 {t0}, {t1}, 4, {t0}', f'v_and_b32 {t1}, 1, {n}', f'v_lshlrev_b32 {t1}, 3, {t1}', f'v_add3_u32 {t0}, {t0}, {t1}, {sT[0]}')
    p(f'v_and_b32 {t1}, 0x28, {ln}', f'v_cmp_eq_u32 vcc, 0, {t1}', f'v_mov_b32 {t1}, 0x7fffffff', f's_nop 0', f'v_cndmask_b32 {P["bST"]}, {t1}, {t0}, vcc')
    p(f's_lshl_b32 {sT[0]}, {sW}, 9', f's_add_u32 {sT[0]}, {sT[0]}, {LDS_X+L_O}')
    p(f'v_lshrrev_b32 {t0}, 3, {n}', f'v_lshlrev_b32 {t0}, 8, {t0}', f'v_lshl_add_u32 {t0}, {g}, 6, {t0}', f'v_and_b32 {t1}, 4, {n}', f'v_lshl_add_u32 {t0}, {t1}, 3, {t0}', f'v_and_b32 {t1}, 3, {n}', f'v_lshlrev_b32 {t1}, 2, {t1}', f'v_add3_u32 {P["oWR"]}, {t0}, {t1}, {sT[0]}')
    sT0, sT1 = f'v{PIN["selT"]}', f'v{PIN["selT"]+1}'
    p(f'v_and_b32 {t0}, 1, {n}', f'v_lshlrev_b32 {t0}, 4, {t0}', f'v_mov_b32 {t1}, 0x3f80', f'v_lshlrev_b32 {t0}, {t0}, {t1}')
    p(f'v_and_b32 {t1}, 14, {n}', f'v_lshlrev_b32 {t2}, 2, {g}', f'v_cmp_eq_u32 vcc, {t1}, {t2}', 's_nop 1', f'v_cndmask_b32 {sT0}, 0, {t0}, vcc')
    p(f'v_lshlrev_b32 {t2}, 3, v72', f'v_lshl_add_u32 {t2}, v73, 2, {t2}', f'v_or_b32 {t2}, 2, {t2}', f'v_cmp_eq_u32 vcc, {t1}, {t2}', 's_nop 1', f'v_cndmask_b32 {sT1}, 0, {t0}, vcc')
    p(f'v_bfe_u32 {t0}, {n}, 2, 1', f'v_lshlrev_b32 {t0}, 4, {t0}', f'v_mov_b32 {t1}, 0x3f80', f'v_lshlrev_b32 {P["selV"]}, {t0}, {t1}')
    p(f's_cmp_lg_u32 {sW}, 3', 's_cbranch_scc1 L_notw3', f'v_and_b32 {t0}, 31, {ln}', f'v_lshlrev_b32 {P["bST"]}, 2, {t0}', f's_lshl_b32 {sT[0]}, {sH}, 2', f'v_mov_b32 {t0}, {sT[0]}',
      f'v_mov_b32 {t1}, 0x7fffffff', f'v_cmp_eq_u32 vcc, 0, {ln}', 's_nop 1', f'v_cndmask_b32 {P["selV"]}, {t1}, {t0}, vcc', 'L_notw3:')
    for nu in range(37):
        u = ORDER[nu]
        left = min(36, nu + 7) - nu
        p(f's_waitcnt vmcnt({4*left})')
        for t in range(2):
            if u[0] == 'o' and u[2] == 4 and t == 1: continue
            k, r = ('v', WB + 8 * t) if u in LDS_UNITS else OPREG[(u, t)]
            for i in range(4):
                p(f'ds_read_b64_tr_b16 {k}[{r+2*i}:{r+2*i+1}], {aTR} offset:{(nu%9)*4096 + (4*(i%2)+32*(i//2))*64 + t*32}')
        if nu + 8 < 37: p('s_waitcnt lgkmcnt(8)' if nu else None, dma(nu + 8)) if not (u[0] == 'o' and u[2] == 4) else p('s_waitcnt lgkmcnt(4)', dma(nu + 8))
        if u in LDS_UNITS:
            p('s_waitcnt lgkmcnt(0)')
            for q in range(4): p(f'ds_write_b128 {P["vW"]}, v[{WB+4*q}:{WB+3+4*q}] offset:{(nu%9)*4096 + q*1024}')
            p('s_waitcnt lgkmcnt(0)')
    p(f'v_lshrrev_b32 {t0}, 2, {n}', f'v_and_b32 {t1}, 1, {n}', f'v_lshl_add_u32 {t0}, {t0}, 1, {t1}', f'v_mul_u32_u24 {t0}, 1152, {t0}', f'v_bfe_u32 {t1}, {n}, 1, 1')
    p(f's_mul_i32 {sT[0]}, {sW}, 288', f'v_lshlrev_b32 {t2}, 3, {g}', f'v_lshl_add_u32 {t2}, {t1}, 2, {t2}', f'v_add3_u32 {t2}, {t2}, {t0}, {sT[0]}')
    for G in range(2):
        for jj in range(2):
            for b in range(2): p(f'buffer_load_dword v{44+4*G+2*jj+b}, {t2}, {SRD_M}, 0 offen offset:{(64*G+32*jj+16*b)*2}')
    p(f'v_mul_u32_u24 {t2}, 288, {g}', f'v_lshl_add_u32 {t2}, {t1}, 4, {t2}', f'v_add_u32 {t2}, {t2}, {t0}')
    p(f'buffer_load_dwordx4 v[28:31], {t2}, {SRD_M}, 0 offen offset:256')
    p(f's_mov_b32 {sT[0]}, 0x05040100', f's_mov_b32 {sT[1]}, 0x07060302', 's_waitcnt vmcnt(0)')
    for G in range(2):
        for j in range(4): p(f'v_perm_b32 v{32+4*G+j}, v{44+4*G+2*(j%2)+1}, v{44+4*G+2*(j%2)}, {sT[j//2]}')
    p([re.sub(r'%W\[(\d+):(\d+)\]', lambda m: f'v[{WB+int(m.group(1))}:{WB+int(m.group(2))}]', x).replace('%vW', P['vW']) for x in wload(('k', 0), 0) + wload(('k', 0), 1)])
    for i in range(12): p(f'v_mov_b64 v[{44+2*i}:{45+2*i}], 0')
    p(f's_mov_b32 {sSTEP}, 0', f's_mov_b32 {sBUD}, 300000', f's_mov_b32 {sTAG}, 1', f's_mov_b32 {sRETRY}, 0', f's_mov_b32 {sMASK}, 0', f's_mov_b32 {sBIG}, {f32bits(2.0**60)}')
    p(f's_mov_b32 {sA0}, {WS_RINGA+RINGA_PAR}', f's_mov_b32 {sA1}, {WS_RINGA+0x20000}', f's_mov_b32 {sA2}, {WS_RINGA+0x40000}')
    p(f's_lshl_b32 {sT[0]}, {sW}, 5', f's_add_u32 {sT[0]}, {sT[0]}, {sH}', f's_lshr_b32 {sT[1]}, {sH}, 2', f's_add_u32 {sT[1]}, {sT[1]}, 64', f's_cmp_lt_u32 {sW}, 2', f's_cselect_b32 {sT[0]}, {sT[0]}, {sT[1]}')
    p(f's_lshl_b32 {sT[0]}, {sT[0]}, 12', f's_sub_u32 {sAPO}, {sT[0]}, {LDS_X}', f's_add_u32 {sAP}, {sA0}, {sAPO}')
    p(f's_mov_b32 {sB0}, {WS_RINGB+RINGB_PAR}', f's_mov_b32 {sB1}, {WS_RINGB+RINGB_PAR+4096}', f's_mov_b32 {sB2}, {WS_RINGB+RINGB_PAR+8192}')
    p(f's_lshl_b32 {sT[0]}, {sH}, 2', f's_add_u32 {sT[0]}, {sT[0]}, {sW}', f's_lshl_b32 {sT[1]}, {sT[0]}, 12')
    p(f's_add_u32 {sKV}, {sT[1]}, {WS_KV-LDS_X}', f's_add_u32 {sKV8}, {sT[1]}, {WS_KV}')
    p(f's_lshl_b32 {sT[1]}, {sT[0]}, 11', f's_add_u32 {sKM}, {sT[1]}, {WS_KVM-LDS_X}', f's_add_u32 {sVM}, {sT[1]}, {WS_KVM}')
    p(f's_mov_b32 {sC}, {f32bits(LOG2E*DH**-0.5)}', 's_mov_b32 s50, 0x33333333', 's_mov_b32 s51, 0x33333333', 's_mov_b32 s52, 0x3f803f80', 's_mov_b32 s53, 0x3f803f80', 's_mov_b32 s62, 0x11111111', 's_mov_b32 s63, 0x11111111')
    p(f's_lshl_b32 {sKF}, {sH}, 8', f's_add_u32 {sKF}, {sKF}, {FL_KV}', f's_lshl_b32 {sKMF}, {sH}, 7', f's_add_u32 {sKMF}, {sKMF}, {FL_KM}', f's_lshl_b32 {sH4}, {sH}, 2', f's_mov_b32 {sCONS}, 0', f's_mov_b32 {sFB}, 48', initwait)
    if not cfg.get('nowait'): p(poll_ge('T_kv0', WS, sKF, 1, 1, 'v78'), f's_add_u32 {sKF}, {sKF}, 4', poll_ge('T_kv1', WS, sKF, 1, 1, 'v78'))
    p(f'buffer_load_dwordx4 v[68:71], {P["vL"]}, {WS}, {sKV} offen sc1', f'buffer_load_dwordx4 v[72:75], {P["vL"]}, {WS}, {sKV} offen offset:1024 sc1', 'v_mov_b64 v[76:77], 0', f's_mov_b32 {sFL}, {FL_ALIGN}', f's_lshl_b32 {sT[0]}, {sW}, 9', f's_add_u32 m0, {sT[0]}, {LDS_X+L_O}')
    p('s_waitcnt vmcnt(0) lgkmcnt(0)')
    return fix_hazards(p.lines, timed=False)

def epilogue():
    return [f'buffer_store_dwordx2 v[{PIN["vm"]}:{PIN["vm"]+1}], v{PIN["vL8"]}, {WS}, {sVM} offen offset:1024 sc1', 'buffer_wbl2 sc1', 'v_mov_b32 v78, 64', 's_waitcnt vmcnt(0)', 's_barrier',
            f's_cmp_lg_u32 {sW}, 3', 's_cbranch_scc1 L_tend', 's_mov_b64 exec, 1', f'buffer_store_dword v78, off, {WS}, {sKMF} sc1', 's_mov_b64 exec, -1', 'L_tend:']

def body(w, red, cfg):
    P = f'T{w}{int(red)}'
    st = cfg.get('stamp') or []
    stamps = []
    def ts(name):
        if not st or (name not in st and name not in ('head', 'end')): return []
        stamps.append(name); r = 62 + 2 * len(stamps)
        return [f's_memtime s[{r}:{r+1}]']
    p = Prog(); tails = Prog()
    SM = lambda acc, A, B, mod='': f'v_smfmac_f32_16x16x64_bf16 {acc}, {A}, {B}, %idx {mod}'.strip()
    acc = {('q', 0): '%qk[0:3]', ('k', 0): '%qk[4:7]', ('q', 1): '%qk[8:11]', ('k', 1): '%qk[12:15]', ('v', 0): '%va[0:3]', ('v', 1): '%va[4:7]'}
    FB = {s: s % 3 for s in range(9)}
    F = lambda slot: f'%F{FB[slot]}'
    MM = lambda m, t, slot: SM(acc[(m, t)], F(slot), opnd((m, slot), t))
    frd = lambda slot: f'ds_read_b128 {F(slot)}, %vL offset:{L_MEM + slot_ks(w, slot)*1024}'
    retry = lambda lbl: [f'{lbl}:', f's_add_u32 {sRETRY}, {sRETRY}, 1', f's_sub_u32 {sBUD}, {sBUD}, 1', f's_cmp_eq_u32 {sBUD}, 0', 's_cbranch_scc1 L_end',
                         f's_add_u32 {sCONS}, {sCONS}, 1', f's_and_b32 {sT[1]}, {sCONS}, 7', f's_cbranch_scc1 {lbl}_nw', 'buffer_wbl2 sc1', 's_waitcnt vmcnt(0)', 'buffer_inv sc1', f'{lbl}_nw:']
    Z16 = lambda r: f'v_mfma_f32_16x16x16_bf16 {r}, %z, %z, 0'
    def halves(dst, a, o):
        return [f'v_add_f32 %{a}[{o}], %{a}[{o}], %{a}[{o+2}]', f'v_add_f32 %{a}[{o+1}], %{a}[{o+1}], %{a}[{o+3}]', f'v_cvt_pk_bf16_f32 {dst}, %{a}[{o}], %{a}[{o+1}]']
    ck2 = lambda d, a, b: f'v_bitop3_b32 {d}, {a}, {b}, {sTAG} bitop3:0x7e'
    ldB = [f'buffer_load_dwordx4 %F0, %bLD, {WS}, {sB0} offen offset:{1024*w} sc1', f'buffer_load_dwordx4 %F1, %bLD, {WS}, {sB1} offen offset:{1024*w} sc1']
    ldB8 = f'buffer_load_dwordx4 %F8, %bLD, {WS}, {sB2} offen sc1'
    ldK = [f'buffer_load_dwordx4 %kx0, %vL, {WS}, {sKV} offen sc1', f'buffer_load_dwordx4 %kx1, %vL, {WS}, {sKV} offen offset:1024 sc1']
    ldV = [f'buffer_load_dwordx2 %VB[0:1], %vL8, {WS}, {sKV8} offen offset:2048 sc1', f'buffer_load_dwordx4 %VB[4:7], %vL, {WS}, {sKV} offen offset:2560 sc1',
           f'buffer_load_dwordx2 %VB[10:11], %vL8, {WS}, {sKV8} offen offset:3584 sc1']
    seq = [(m, t, s) for s in (0, 1) for m in 'qk' for t in (0, 1)] + [('v', t, s) for s in (0, 1) for t in (0, 1)]
    seq += [(m, t, s) for s in (2, 3, 4, 5) for m in 'qk' for t in (0, 1)] + [(m, t, s) for t in (0, 1) for m in 'qk' for s in (6, 7, 8)]
    fill = {i: [] for i in range(-1, 40)}
    def put(i, *xs):
        for x in xs: fill[i] += x if isinstance(x, list) else [x]
    put(0, f'ds_write_b128 %vL, %F0 offset:{L_MEM + w*1024}')
    put(1, ck2('%c0', '%F0[0]', '%F0[2]'))
    put(4, f'ds_write_b128 %vL, %F1 offset:{L_MEM + (4+w)*1024}')
    put(5, ck2('%c1', '%F1[0]', '%F1[2]'))
    put(6, f'v_bitop3_b32 %c0, %c0, %c1, {sMASK} bitop3:0xa8')
    put(7, 'v_cmp_ne_u32 vcc, 0, %c0')
    put(8, '@ldsdone', f's_cbranch_vccnz {P}_br', 's_barrier', frd(2))
    nxtW = {('k', 0): ('v', 1), ('v', 1): ('k', 3), ('k', 3): ('q', 5), ('q', 5): ('k', 8), ('k', 8): ('v', 8)}
    wpos = {(('k', 0), 0): (2, 3), (('k', 0), 1): (5, 6), (('v', 1), 0): (10, 12), (('v', 1), 1): (13, 14), (('k', 3), 0): (18, 19), (('k', 3), 1): (20, 21),
            (('q', 5), 0): (24, 25), (('q', 5), 1): (26, 28), (('k', 8), 0): (33, 34)}
    for (u, t), pos in wpos.items():
        assert seq.index((u[0], t, u[1])) <= pos[0]
        for i, x in zip(pos, wload(nxtW[u], t)): fill[i].insert(0, x)
    for i, s in ((9, 3), (11, 4), (15, 5), (22, 6), (23, 7), (27, 8)): put(i, frd(s))
    if w == 3:
        put(12, ck2('%c0', '%F8[0]', '%F8[2]')); put(13, f'v_and_b32 %c0, {sMASK}, %c0'); put(14, 'v_cmp_ne_u32 vcc, 0, %c0')
        put(16, f's_cbranch_vccnz {P}_b8r', f'{P}_b8c:', f'ds_write_b128 %vL, %F8 offset:{L_MEM + 8192}')
        tails(retry(f'{P}_b8r'), ldB8, 's_waitcnt vmcnt(0)', ck2('%c0', '%F8[0]', '%F8[2]'), 'v_and_b32 %c0, 1, %c0', 'v_cmp_ne_u32 vcc, 0, %c0', f's_cbranch_vccnz {P}_b8r', f's_branch {P}_b8c')
        put(16, '@use %c0')
    if w == 3 and cfg.get('flag', 1):
        fp, f0, fq, fn = cfg.get('fp', 9), cfg.get('f0', 8), cfg.get('fq', 3), cfg.get('fn', 5)
        fld = f'buffer_load_dword %fl, %bST, {WS}, {sFL} offen sc1'
        put(fp - 1, f'v_add_u32 %fs, {sSTEP}, 1'); put(fp, f'buffer_store_dword %fs, %selV, {WS}, {sFL} offen')
        for k in range(fn):
            put(fp + f0 + fq * k, fld)
            if k == 0: put(fp + f0, '@mark f')
        fc = fp + f0 + cfg.get('fw', 13)
        put(fc, '@waitmark f', f'v_cmp_ge_u32 {sFV}, {sSTEP}, %fl ;nowait'); put(fc + 2, f's_cmp_lg_u64 {sFV}, 0', f's_cbranch_scc1 {P}_fr', f'{P}_fc:')
        tails(f'{P}_fr:', fld, f's_add_u32 {sRETRY}, {sRETRY}, 0x10000', f'v_cmp_ge_u32 {sFV}, {sSTEP}, %fl', f's_sub_u32 {sFB}, {sFB}, 1', f's_cmp_eq_u32 {sFB}, 0', f's_cbranch_scc1 {P}_fc',
              f's_cmp_lg_u64 {sFV}, 0', f's_cbranch_scc0 {P}_fc', f's_waitcnt vmcnt({fn})', f's_branch {P}_fr')
    fill[22].insert(0, 's_barrier'); fill[22].insert(0, '@ldsdone')
    put(17 if w == 3 else 12 + w, f'buffer_store_dwordx2 %vm, %vL8, {WS}, {sVM} offen offset:1024 sc1')
    if cfg.get('touch', 1):
        put(9 + w, f's_add_u32 {sT[0]}, {sKV8}, {H*16384}', 'v_lshlrev_b32 %ta, 3, %vL8'); put(10 + w, f'buffer_load_dword %ta, {WS}, {sT[0]} offen sc1 lds')
    upd = [f's_xor_b32 {sA0}, {sA0}, {WS_RINGA ^ (WS_RINGA+RINGA_PAR)}', f's_add_u32 {sA1}, {sA0}, 0x20000', f's_add_u32 {sA2}, {sA0}, 0x40000', f's_add_u32 {sAP}, {sA0}, {sAPO}',
           f's_xor_b32 {sB0}, {sB0}, {RINGB_PAR}', f's_xor_b32 {sB1}, {sB1}, {RINGB_PAR}', f's_xor_b32 {sB2}, {sB2}, {RINGB_PAR}',
           f's_bfe_u32 {sTAG}, {sSTEP}, 0x10001', f's_xor_b32 {sTAG}, {sTAG}, 1', f's_mov_b32 {sMASK}, 1', f's_add_u32 {sVM}, {sKM}, {LDS_X}', f's_mov_b64 vcc, {sEVEN}']
    for k, x in enumerate(upd): put((29, 29, 30, 30, 31, 31, 32, 32, 35, 35, 36, 36)[k], x)
    h = halves('%Y0[0]', 'qk', 0) + halves('%Y0[1]', 'qk', 4)
    for i, x in zip((32, 33, 34, 35, 36, 37), h): put(i, x)
    hq, hk = halves('%Y1[0]', 'qk', 8), halves('%Y1[1]', 'qk', 12)
    put(38, hq[0]); put(39, hq[1])
    p(f'{P}_head:', ts('head'))
    for i, x in enumerate(seq):
        p(MM(*x), fill[i])
        if i == 11: p(ts('v01'))
    tails(retry(f'{P}_br'), ldB, wload(('k', 0), 0), wload(('k', 0), 1), 's_nop 7', [f'v_mov_b64 %qk[{2*i}:{2*i+1}], 0' for i in range(8)], [f'v_mov_b64 %va[{2*i}:{2*i+1}], 0' for i in range(4)],
          's_waitcnt vmcnt(0) lgkmcnt(0)', f's_branch {P}_head')
    p(ts('qk'))
    FB.update({2: 0, 3: 1, 4: 0, 5: 1})
    wl = wload(('v', 8), 1)
    p('v_mfma_f32_16x16x16_bf16 %T0, %Y0, %selT, 0', hq[2], wl, hk)
    p(ldV[0] if w % 2 else None, 'v_mfma_f32_16x16x16_bf16 %T1, %Y1, %selT, 0', None if w % 2 else ldV[0])
    p('v_cvt_pk_bf16_f32 %X[0], %T0[0], %T0[1]', 'v_cvt_pk_bf16_f32 %X[1], %T0[2], %T0[3]', MM('v', 0, 6), ldV[1])
    p('v_cvt_pk_bf16_f32 %X[2], %T1[0], %T1[1]', 'v_cvt_pk_bf16_f32 %X[3], %T1[2], %T1[3]')
    if w == 3 and cfg.get('flag', 1): p('@use %fl')
    p('v_mfma_f32_16x16x32_bf16 %Sm, %X, %X, 0', 'v_mfma_f32_16x16x32_bf16 %S0, %kx0, %X, 0', ldV[2], 'v_mfma_f32_16x16x32_bf16 %S1, %kx1, %X, 0')
    dpp = 'quad_perm:[0,1,0,1] row_mask:0xf bank_mask:0xf'
    p(f'v_cndmask_b32_dpp %sm, %Sm[3], %Sm[2], vcc {dpp}', f'v_mul_f32 %sm, {sC}, %sm', MM('v', 1, 6), f'ds_write_b32 %vL, %sm offset:{L_SM + w*4}')
    for i in range(4): p(f'v_cndmask_b32_dpp %S0[{i}], %S1[{i}], %S0[{i}], vcc {dpp}')
    p(f'ds_write_b128 %vL, %S0 offset:{L_SX + w*1024}', ts('Sw'))
    w5 = wload(('v', 5), 0) + wload(('v', 5), 1)
    p(MM('v', 0, 7), frd(2), MM('v', 1, 7), frd(3), MM('v', 0, 8), f'buffer_store_dwordx4 %X, %vL, {WS}, {sKM} offen sc1', MM('v', 1, 8), 'v_mov_b64 %z, 0')
    p('@ldsdone', 's_barrier', f'ds_read_b128 %Rm, %vL offset:{L_SM}')
    rd = [f'ds_read_b128 %R{i}, %vL offset:{L_SX + ((w+1+i)%4)*1024}' for i in range(3)]
    p(rd[0], MM('v', 0, 2), rd[1], rd[2], MM('v', 1, 2), frd(4), w5[0], MM('v', 0, 3), w5[1], w5[2], MM('v', 1, 3), frd(5), w5[3])
    p('v_add_f32 %Rm[0], %Rm[0], %Rm[1]', 'v_add_f32 %Rm[2], %Rm[2], %Rm[3]')
    for i in range(4): p(f'v_add_f32 %S0[{i}], %S0[{i}], %R0[{i}]')
    p('v_add_f32 %sm2, %Rm[0], %Rm[2]', MM('v', 0, 4), 'v_exp_f32 %em, %sm2')
    for i in range(4): p(f'v_add_f32 %R1[{i}], %R1[{i}], %R2[{i}]')
    p(MM('v', 1, 4), 'v_cvt_pk_bf16_f32 %Pa[1], %em, 0', 'v_mov_b32 %Pa[3], 0')
    for i in range(2): p(f'v_add_f32 %S0[{i}], %S0[{i}], %R1[{i}]')
    wo = wload(('o', 0, 0), 0) + wload(('o', 0, 0), 1)
    p(MM('v', 0, 5), wo[0], 'v_add_f32 %S0[2], %S0[2], %R1[2]', MM('v', 1, 5), wo[1], 'v_add_f32 %S0[3], %S0[3], %R1[3]', ts('Ssum'))
    p(Z16('%O[0:3]'), 'v_permlane32_swap_b32 %Pa[1], %Pa[3]', 'v_exp_f32 %E[0], %S0[0]', Z16('%O[4:7]'), 'v_exp_f32 %E[1], %S0[1]', 'v_exp_f32 %E[2], %S0[2]', 'v_exp_f32 %E[3], %S0[3]')
    hv0, hv1 = halves('%VB[2]', 'va', 0), halves('%VB[8]', 'va', 4)
    p(f'v_mov_b64 %VB[12:13], {sONE}', f'v_mov_b64 %VB[14:15], {sONE}')
    p('v_cvt_pk_bf16_f32 %Pa[0], %E[0], %E[1]', 'v_cvt_pk_bf16_f32 %Pa[2], %E[2], %E[3]', hv0, ts('PV'))
    pv = ['v_mfma_f32_16x16x32_bf16 %Ls, %Pa, %VB[12:15], 0', SM('%O[0:3]', '%Pa', '%VB[0:7]', 'abid:1'), SM('%O[4:7]', '%Pa', '%VB[6:13]', 'abid:1')]
    lsum = ['v_add_f32 %Ls[0], %Ls[0], %Ls[2]', 'v_add_f32 %Ls[1], %Ls[1], %Ls[3]', 'v_rcp_f32 %Ls[2], %Ls[0]', 'v_rcp_f32 %Ls[3], %Ls[1]']
    p('@def %VB[3], %VB[9]', pv[0], hv1, pv[1], wo[2], wo[3], pv[2], lsum)
    post = ['v_pk_add_f32 %O[0:1], %O[0:1], %O[2:3]', 'v_pk_add_f32 %O[4:5], %O[4:5], %O[6:7]', 'v_pk_mul_f32 %O[0:1], %O[0:1], %Ls[2:3]', 'v_pk_mul_f32 %O[4:5], %O[4:5], %Ls[2:3]',
            'v_cvt_pk_bf16_f32 %O[2], %O[0], %O[4]', 'v_cvt_pk_bf16_f32 %O[3], %O[1], %O[5]', 'ds_write2_b32 %oWR, %O[2], %O[3] offset0:0 offset1:4']
    p(post, ts('ow'))
    p(Z16('%C0'), 'v_max3_f32 %mx, %Ls[0], %Ls[1], %Ls[2]', 'v_max_f32 %mx, %mx, %Ls[3]', f'v_cmp_nle_f32 vcc, %mx, {sBIG}', Z16('%C1'), 'v_mov_b32 %vm[0], %VB[2]', 'v_mov_b32 %vm[1], %VB[8]',
      f's_cmp_eq_u32 {sSTEP}, {NSEG-1}', 's_cbranch_scc1 L_team_done', f's_cbranch_vccnz {P}_sr', '@use %S0, %sm2, %VB, %O, %Ls, %Pa', f'{P}_sc:', Z16('%C2'), Z16('%C3'))
    fb = Prog()
    mx, my = '%Ls[0]', '%Ls[1]'
    fb(f'{P}_sr:', 's_nop 7', f'v_max3_f32 {mx}, %S0[0], %S0[1], %S0[2]', f'v_max3_f32 {mx}, {mx}, %S0[3], %sm2', f'v_max_f32_dpp {mx}, {mx}, {mx} quad_perm:[2,3,0,1] row_mask:0xf bank_mask:0xf')
    fb(f'v_mov_b32 {my}, {mx}', f'v_permlane16_swap_b32 {mx}, {my}', f'v_max_f32 {mx}, {mx}, {my}', f'v_mov_b32 {my}, {mx}', f'v_permlane32_swap_b32 {mx}, {my}', f'v_max_f32 {mx}, {mx}, {my}')
    fb([f'v_sub_f32 %S0[{i}], %S0[{i}], {mx}' for i in range(4)], f'v_sub_f32 %sm2, %sm2, {mx}', [f'v_exp_f32 %S0[{i}], %S0[{i}]' for i in range(4)], 'v_exp_f32 %sm2, %sm2')
    fb('v_cvt_pk_bf16_f32 %Pa[0], %S0[0], %S0[1]', 'v_cvt_pk_bf16_f32 %Pa[2], %S0[2], %S0[3]', 'v_cvt_pk_bf16_f32 %Pa[1], %sm2, 0', 'v_mov_b32 %Pa[3], 0', 'v_permlane32_swap_b32 %Pa[1], %Pa[3]')
    fb([f'v_mov_b64 %O[{2*i}:{2*i+1}], 0' for i in range(4)], pv, lsum, post, 's_waitcnt lgkmcnt(0)', f's_branch {P}_sc')
    p('@ldsdone', 's_barrier', f'ds_read_b128 %A0, %vL offset:{L_O}', f'ds_read_b128 %A1, %vL offset:{L_O+1024}', Z16('%C4'))
    if w == 3 and not cfg.get('nopub'): p(f'v_mov_b32 %kf, {sSTEP}', f's_sub_u32 {sT[0]}, {sKMF}, {sH4}', f'buffer_store_dword %kf, %selV, {WS}, {sT[0]} offen sc1')
    p('v_mov_b64 %C7[0:1], 0', 'v_mov_b64 %C7[2:3], 0', Z16('%C5'), 'v_mov_b64 %C8[0:1], 0', 'v_mov_b64 %C8[2:3], 0', Z16('%C6'), ts('Wo'))
    pend = []
    tagf = lambda r: f'v_bfi_b32 {r}, 1, {sTAG}, {r}'
    w3 = wload(('o', 0, 3), 0) + wload(('o', 0, 3), 1)
    i = 0
    for t in range(9):
        for kk in range(2):
            p(SM(f'%C{t}', f'%A{kk}', opnd(('o', kk, t // 2), t % 2)))
            if i < 2: p(w3[i])
            if i == 2: p(w3[2:])
            if kk == 1:
                dst = f'%G{t//4}[{t%4}]' if t < 8 else '%G2'
                for x in halves(dst, f'C{t}', 0): pend.append((i + 2, x))
                if t % 4 == 0: pend.append((i + 2, tagf(dst)))
                if t == 3: pend.append((i + 4 + (w if cfg.get('stag', 1) else 0), f'buffer_store_dwordx4 %G0, %aST, {WS}, {sA0} offen'))
                if t == 7: pend.append((i + 2, f'buffer_store_dwordx4 %G1, %aST, {WS}, {sA1} offen'))
                if t == 8: pend.append((i + 2, f'buffer_store_dword %G2, %aST2, {WS}, {sA2} offen'))
            for x in [x for x in pend if x[0] <= i and x[1].startswith('buffer') and t < 8]:
                p(x[1]); pend.remove(x)
            n = 0
            for x in [x for x in pend if x[0] <= i and not x[1].startswith('buffer')][:2]:
                p(x[1]); pend.remove(x)
            i += 1
    for _, x in pend: p(x)
    p(ts('WoEnd'))
    heatseq = ['%qk[0:3]', '%qk[4:7]', '%qk[8:11]', '%qk[12:15]', '%va[0:3]', '%va[4:7]']
    hs = [0]
    hmode = cfg.get('heat', 'mmmm')[w]
    def heat(n, extra=(), real=False):
        out = []; extra = list(extra)
        for k in range(n):
            ex = extra[:2]; extra = extra[2:]
            if hmode == 'm' or (real and k >= n - 6):
                out += [Z16(heatseq[hs[0] % 6])] + ex; hs[0] += 1
            elif hmode == 'n': out += ex + nopl(4 - len(ex))
            else: out += ex + ['v_mov_b32 %hd, 0'] * (4 - len(ex))
        return out + extra
    upd2 = [f's_add_u32 {sKV}, {sKV}, {H*16384}', f's_add_u32 {sKV8}, {sKV8}, {H*16384}', f's_add_u32 {sKM}, {sKM}, {H*8192}', f's_add_u32 {sSTEP}, {sSTEP}, 1', f's_mov_b32 {sCONS}, 0', f's_mov_b32 {sFB}, 48']
    wk = wload(('k', 0), 0) + wload(('k', 0), 1)
    dA = cfg.get('dA0', 0) if w == 0 else cfg.get('dA1', 12)
    wA = cfg.get('wA', 12)
    if red:
        ldA = [f'buffer_load_dwordx4 %Z{j}, %vL, {WS}, {sAP} offen offset:{1024*j} sc1' for j in range(4)]
        mm = [f'v_mfma_f32_16x16x32_bf16 %Rd, %selR, %Z{j}, {"0" if j == 0 else "%Rd"}' for j in range(4)]
        sel = sum([[f's_lshl_b64 {sM4T}, {sM4}, {t}', f'v_cndmask_b32 %selR[{t}], 0, %selV, {sM4T}'] for t in range(4)], [])
        p(heat(dA), ldA, heat(wA, upd2 + wk + sel), ts('Aw'), f'{P}_ac:')
        if w == 2:
            cks = [ck2('%c0', '%Z0[0]', '%Z0[1]')] + [f'v_bitop3_b32 %c0, %c0, %Z{j}[{q}], {sTAG} bitop3:0xf6' for j in range(4) for q in range(4)][2:]
            p(mm[0], cks[:3], mm[1], cks[3:7], mm[2], cks[7:11], mm[3], cks[11:], 'v_and_b32 %c0, 1, %c0')
        else:
            p(mm[0], mm[1], ck2('%c0', '%Z0[0]', '%Z1[0]'), mm[2], mm[3], ck2('%c1', '%Z2[0]', '%Z3[0]'), 'v_bitop3_b32 %c0, %c0, %c1, 1 bitop3:0xa8')
        p('v_cmp_ne_u32 vcc, 0, %c0')
        for r in range(4): p(f'v_add_f32_dpp %Rd[{r}], %Rd[{r}], %Rd[{r}] row_ror:8 row_mask:0xf bank_mask:0xf')
        p('v_cvt_pk_bf16_f32 %Bo[0], %Rd[0], %Rd[1]', 'v_cvt_pk_bf16_f32 %Bo[1], %Rd[2], %Rd[3]', tagf('%Bo[0]'), f's_cbranch_vccnz {P}_ar', '@use %Z0, %Z1, %Z2, %Z3, %selR')
        p(f'buffer_store_dwordx2 %Bo, %bST, {WS}, {sB0} offen')
        tails(retry(f'{P}_ar'), ldA, 's_waitcnt vmcnt(0)', f's_branch {P}_ac')
    else:
        kfl = [f's_add_u32 {sKF}, {sKF}, 4', f's_buffer_load_dword {sKFV}, {WS}, {sKF} glc'] if (w == 3 and not cfg.get('nowait')) else []
        p(heat(cfg.get('dA1', 12) + wA + cfg.get('hx', 8), kfl + upd2 + wk))
    p(ts('red'), 's_barrier', heat(cfg.get('dB', 8)), ldB[0], heat(1), ldB[1], heat(1), ldB8 if w == 3 else None, ldK[0], heat(1), ldK[1], heat(max(cfg.get('wB', 8), 6), real=True))
    if w == 3 and not cfg.get('nowait'):
        p('s_waitcnt lgkmcnt(0)', f's_cmp_eq_u32 {sKFV}, 0', '@def %c0', f's_cbranch_scc1 {P}_kr', '@use %c0', f'{P}_kc:')
        tails(f'{P}_kr:', f's_cmp_ge_u32 {sSTEP}, {NSEG-1}', f's_cbranch_scc1 {P}_kc', f'buffer_load_dword %c0, off, {WS}, {sKF} sc1', f's_sub_u32 {sBUD}, {sBUD}, 1', f's_cmp_eq_u32 {sBUD}, 0', 's_cbranch_scc1 L_end',
              's_waitcnt vmcnt(0)', 'v_cmp_ne_u32 vcc, 0, %c0', f's_cbranch_vccnz {P}_kc', f's_branch {P}_kr')
    if st:
        p(ts('end'), 's_waitcnt lgkmcnt(0)')
        for k in range(1, len(stamps)): p(f's_sub_u32 s{64+2*k}, s{64+2*k}, s64', f's_add_u32 s{87+k}, s{87+k}, s{64+2*k}')
    p(f's_branch {P}_head')
    if cfg.get('nocomm'): p.lines = [x for x in p.lines if not x.startswith('s_cbranch_vccnz')]
    if cfg.get('forcefb'): p.lines = [x.replace('s_cbranch_vccnz', 's_branch') if x.endswith('_sr') else x for x in p.lines]
    if cfg.get('kvfix'): p.lines = [x for x in p.lines if not x.startswith((f's_add_u32 {sKV},', f's_add_u32 {sKV8},'))]
    if cfg.get('nopub'): p.lines = [x for x in p.lines if not (x.startswith('buffer_store') and 'sc1' in x)]
    al = Alloc(list(range(28, 80)), PIN)
    al.decl(**SIZES)
    al.decl(ta=1, kf=1, fl=1, fs=1, hd=1, selR=4, Y0=2, Y1=2, T0=4, T1=4, X=4, S0=4, S1=4, Sm=4, VB=16, sm=1, sm2=1, em=1, E=4, R0=4, R1=4, R2=4, Rm=4, mx=1, Pa=4, Ls=4, O=8, z=2,
            A0=4, A1=4, G0=4, G1=4, G2=1, c0=1, c1=1, Z0=4, Z1=4, Z2=4, Z3=4, Rd=4, Bo=2, **{f'C{t}': 4 for t in range(9)})
    al.run(p.lines)
    extra = {e[0] for e in al.livein} - set(PIN)
    assert not extra, extra
    rep = []
    out = fix_hazards(auto_waits(al.sub(p.lines), loop=True), loop=True, report=rep)
    if cfg.get('fine'):
        pts = cfg['fine']; o2 = []; k = 0; n = 0; names = []
        for ln in out[:-1]:
            if ln.startswith(('v_mfma', 'v_smfmac')):
                if n in pts: k += 1; o2.append(f's_memtime s[{64+2*k}:{65+2*k}]'); names.append(f'{n}:' + ln[2:40])
                n += 1
            o2.append(ln)
            if ln == f'{P}_head:': o2.append('s_memtime s[64:65]')
        o2 += ['s_waitcnt lgkmcnt(0)']
        for j in range(1, k + 1): o2 += [f's_sub_u32 s{64+2*j}, s{64+2*j}, s64', f's_add_u32 s{87+j}, s{87+j}, s{64+2*j}']
        out = o2 + out[-1:]; stamps = ['head'] + names
    if cfg.get('verbose'): print(P, len(out), 'instrs; nops:', rep)
    cfg['_stamps'] = stamps
    return out + al.sub(tails.lines) + fix_hazards(al.sub(fb.lines), timed=False)

def dispatch():
    return [f's_cmp_eq_u32 {sW}, 0', 's_cbranch_scc1 T01_head', f's_cmp_eq_u32 {sW}, 1', 's_cbranch_scc1 T11_head', f's_cmp_eq_u32 {sW}, 3', 's_cbranch_scc1 T30_head',
            f's_and_b32 {sT[0]}, {sH}, 3', f's_cmp_eq_u32 {sT[0]}, 0', 's_cbranch_scc1 T21_head', 's_branch T20_head']

def all_bodies(cfg):
    out = []
    for w, red in ((0, True), (1, True), (2, True), (2, False), (3, False)):
        out += ['.p2align 6'] + body(w, red, cfg)
    return out

if __name__ == '__main__':
    cfg = dict(verbose=True)
    b = body(0, True, cfg)
    print(fmt(b))
    all_bodies(cfg)
    print(len(prologue(cfg, [])))
```

```python
import sys
from asmlib import *
from layout import *
import team, roleq, roleo
NAME = 'interleave_layers__memory_aug_recurrent_mem_tr__mha_block__prompt'

def initwait(tag):
    return [f's_cmp_lg_u32 {sW}, 0', f's_cbranch_scc1 {tag}_iw_ok', 's_mov_b32 s94, 36'] + poll_ge(f'{tag}_iw', DBG, 's94', 256, 1, 'v79') + ['s_barrier']

def a_kernels(cfg):
    p = Prog()
    stat = cfg.get('stat')
    for l in (1, 0):
        p('.p2align 8', f'a{l}_kernel:', f's_mov_b32 {sLAYER}, {l}')
        if l == 1: p('s_branch A_entry')
    p('A_entry:', 's_cmp_ge_u32 s2, 256', 's_cbranch_scc1 L_exit')
    p('s_load_dwordx4 s[64:67], s[0:1], 0', 's_load_dwordx8 s[68:75], s[0:1], 16', 's_load_dwordx4 s[76:79], s[0:1], 88', 's_load_dwordx2 s[80:81], s[0:1], 64')
    if stat: p('s_memrealtime s[98:99]')
    p('s_getreg_b32 s3, hwreg(HW_REG_XCC_ID, 0, 3)', 'v_lshrrev_b32 v8, 6, v0', f's_mov_b32 s95, {SPIN}', f'v_readfirstlane_b32 {sW}, v8', 's_waitcnt lgkmcnt(0)')
    if cfg.get('fakexcc'): p(cfg['fakexcc'])
    p(srd(4, 76, 256), srd(8, 78, WS_BYTES), srd(12, 68, 576*8192), srd(16, 70, 576*8192), srd(20, 72, 576*8192), srd(24, 74, 4096*1152))
    p(f's_add_u32 s82, s78, {WS_X2}', 's_addc_u32 s83, s79, 0', f's_cmp_eq_u32 {sLAYER}, 0', 's_cselect_b32 s82, s64, s82', 's_cselect_b32 s83, s65, s83', srd(28, 82, S*D*2))
    p('s_lshl_b32 s84, s3, 2', 'v_mov_b32 v2, 1', f's_cmp_lg_u32 {sW}, 0', 's_cbranch_scc1 A_c1', 's_mov_b64 exec, 1', f'buffer_atomic_add v2, off, {DBG}, s84 sc0', 's_mov_b64 exec, -1', 'A_c1:')
    p('v_mov_b64 v[4:5], 0', 'v_mov_b64 v[6:7], 0', 'v_lshlrev_b32 v3, 4, v0', 's_lshl_b32 s85, s2, 12', f's_add_u32 s86, s85, {WS_RINGA}', f's_add_u32 s87, s85, {WS_RINGB - 144*4096}',
      's_cmp_lt_u32 s2, 144', 's_cselect_b32 s86, s86, s87', f's_add_u32 s87, s85, {WS_FLAG - 152*4096}', 's_cmp_lt_u32 s2, 152', 's_cselect_b32 s86, s86, s87', 's_cmp_lt_u32 s2, 168', 's_cbranch_scc0 A_c2',
      f'buffer_store_dwordx4 v[4:7], v3, {WS}, s86 offen sc1', 'A_c2:')
    p('s_waitcnt vmcnt(0)', f's_cmp_lg_u32 {sW}, 0', 's_cbranch_scc1 A_c3', 'v_readfirstlane_b32 s85, v2', 's_lshl_b32 s86, s3, 5', 's_add_u32 s86, s86, s85', 's_cmp_lt_u32 s85, 32', 's_cbranch_scc1 A_c4')
    p('v_mov_b32 v2, 1', 's_mov_b32 s84, 32', 's_mov_b64 exec, 1', f'buffer_atomic_add v2, off, {DBG}, s84 sc0', 's_mov_b64 exec, -1', 's_waitcnt vmcnt(0)', 'v_readfirstlane_b32 s85, v2')
    p('A_o1:', f'buffer_load_dwordx4 v[4:7], off, {DBG}, 0 sc1', f'buffer_load_dwordx4 v[8:11], off, {DBG}, 0 offset:16 sc1', 's_sub_u32 s95, s95, 1', 's_cmp_eq_u32 s95, 0', 's_cbranch_scc1 L_end', 's_waitcnt vmcnt(0)',
      'v_add3_u32 v12, v4, v5, v6', 'v_add3_u32 v12, v12, v7, v8', 'v_add3_u32 v12, v12, v9, v10', 'v_add_u32 v12, v12, v11', 'v_cmp_gt_u32 vcc, 0x100, v12', 's_cbranch_vccnz A_o1')
    for x in range(8):
        p(f'v_readfirstlane_b32 s84, v{4+x}', 's_min_u32 s84, s84, 32', f's_add_u32 s86, s84, {32*x}', 's_add_u32 s86, s86, s85', 's_sub_u32 s84, 32, s84', 's_cmp_lt_u32 s85, s84', 's_cbranch_scc1 A_c4', 's_sub_u32 s85, s85, s84')
    p('s_branch L_end')
    p('A_c4:', 'v_mov_b32 v2, s86', 'v_mov_b32 v1, 0', 'ds_write_b32 v1, v2', 's_waitcnt lgkmcnt(0)', 'A_c3:', 's_barrier', 'v_mov_b32 v1, 0', 'ds_read_b32 v2, v1', 's_waitcnt lgkmcnt(0)', f'v_readfirstlane_b32 {sSLOT}, v2', 's_barrier')
    p(f's_cmp_lg_u32 {sW}, 0', 's_cbranch_scc1 A_c5', 'v_mov_b32 v2, 1', 's_mov_b32 s84, 36', 's_mov_b64 exec, 1', f'buffer_atomic_add v2, off, {DBG}, s84', 's_mov_b64 exec, -1', 'A_c5:')
    roles = cfg.get('roles', 'TQOB')
    far = lambda lbl: ['s_getpc_b64 s[84:85]', f'{lbl}_j:', f's_add_u32 s84, s84, {lbl}-{lbl}_j', 's_addc_u32 s85, s85, 0', 's_setpc_b64 s[84:85]']
    p(f's_cmp_lt_u32 {sSLOT}, 32', f's_cbranch_scc1 {"R_team" if "T" in roles else "L_end"}', f's_cmp_lt_u32 {sSLOT}, 160', f's_cbranch_scc1 {"R_q" if "Q" in roles else "L_end"}')
    p(f's_sub_u32 {roleo.sR}, {sSLOT}, 160', f's_lshr_b32 {roleo.sG}, {roleo.sR}, 5', f's_and_b32 {roleo.sR}, {roleo.sR}, 31', f's_cmp_lt_u32 {roleo.sR}, 18', f's_cbranch_scc1 {"R_o" if "O" in roles else "L_end"}')
    lines = fix_hazards(p.lines, timed=False)
    mark = ['s_memrealtime s[100:101]', 's_memtime s[86:87]', 's_waitcnt lgkmcnt(0)'] + [f's_mov_b32 s{i}, 0' for i in range(88, 95)] if stat else []
    if 'B' in roles: lines += srd(12, 80, 576*3456) + roleo.b_role(cfg, initwait('B') + mark)
    else: lines += ['s_branch L_end']
    if 'O' in roles: lines += ['R_o:'] + roleo.o_role(cfg, initwait('O') + mark)
    if 'Q' in roles: lines += ['R_q:'] + roleq.prologue() + initwait('Q') + mark + roleq.main_loop(cfg)
    if 'T' in roles:
        lines += ['R_team:', f's_mov_b32 {sH}, {sSLOT}'] + srd(28, 66, 9216) + team.prologue(cfg, initwait('T')) + mark + team.dispatch() + team.all_bodies(cfg) + ['L_team_done:'] + team.epilogue()
    lines += ['L_end:', 's_waitcnt vmcnt(0)']
    if stat:
        q = Prog()
        q('s_memrealtime s[64:65]', 's_memtime s[66:67]', 's_waitcnt lgkmcnt(0)', 's_sub_u32 s66, s66, s86')
        vals = ['s98', 's100', 's64', 's66', 's60', 's95', sSLOT, '0'] + [f's{i}' for i in range(88, 95)] + ['0']
        q([f'v_mov_b32 v{32+i}, {x}' for i, x in enumerate(vals)])
        q(f's_lshl_b32 s3, {sLAYER}, 8', f's_add_u32 s3, s3, {sSLOT}', 's_lshl_b32 s3, s3, 2', f's_add_u32 s3, s3, {sW}', 's_lshl_b32 s3, s3, 6', f's_add_u32 s3, s3, {WS_STAT}', 's_mov_b64 exec, 1')
        q([f'buffer_store_dwordx4 v[{32+4*i}:{35+4*i}], off, {WS}, s3 offset:{16*i}' for i in range(4)], 's_waitcnt vmcnt(0)')
        lines += q.lines
    lines += ['L_exit:', 's_endpgm']
    return lines

def desc(name, vgpr, agpr):
    acc = (vgpr + 3) // 4 * 4
    return f""".p2align 6
.amdhsa_kernel {name}
  .amdhsa_next_free_vgpr {acc + agpr if agpr else vgpr}
  .amdhsa_next_free_sgpr 102
  .amdhsa_accum_offset {acc}
  .amdhsa_group_segment_fixed_size 0
  .amdhsa_kernarg_size 104
  .amdhsa_user_sgpr_count 2
  .amdhsa_user_sgpr_kernarg_segment_ptr 1
  .amdhsa_system_sgpr_workgroup_id_x 1
.end_amdhsa_kernel
"""

def full(cfg):
    import kb
    geo = {'a0_kernel': (256, 256, 163840, 256, 256), 'a1_kernel': (256, 256, 163840, 256, 256)}
    geo.update(kb.GEO)
    launches = cfg.get('launches', ['a0_kernel', 'battn_kernel', 'bo0_kernel', 'a1_kernel', 'battn_kernel', 'bo1_kernel'])
    head = ''.join(f'; @launch kernel={k} grid=({geo[k][0]},1,1) block=({geo[k][1]},1,1) lds={geo[k][2]}\n' for k in launches)
    body = a_kernels(cfg) + kb.kernels(cfg)
    txt = head + '.amdgcn_target "amdgcn-amd-amdhsa--gfx950"\n.text\n' + ''.join(f'.globl {k}\n.type {k},@function\n' for k in geo) + fmt(body)
    txt += '.section .rodata,"a"\n' + ''.join(desc(k, g[3], g[4]) for k, g in geo.items())
    return txt

DEFAULT = dict(heat='nnnm', fp=17, f0=8, fw=12, fn=4, dA0=14, dA1=22, dB=16, wA=14, wB=10)
if __name__ == '__main__':
    txt = full(dict(DEFAULT))
    open(f'cdna_kernels/{NAME}.s', 'w').write(txt)
    print(len(txt), 'bytes')
```

```python
import re, random

class Prog:
    def __init__(self):
        self.lines = []
    def I(self, *xs):
        for x in xs:
            if isinstance(x, (list, tuple)):
                self.I(*x)
            elif x is None:
                continue
            else:
                for ln in str(x).split('\n'):
                    ln = ln.strip()
                    if ln:
                        self.lines.append(ln)
        return self
    __call__ = I
    def text(self):
        return fmt(self.lines)

def fmt(lines):
    return ''.join((x + '\n' if (x.endswith(':') or x.startswith('.')) else '    ' + x + '\n') for x in lines)

def nopl(n):
    s = []
    while n > 0:
        k = min(n, 16); s.append(f's_nop {k-1}'); n -= k
    return s

VTOK = re.compile(r'%([A-Za-z_][A-Za-z0-9_]*)(?:\[(\d+)(?::(\d+))?\])?')
PTOK = re.compile(r'(?<![A-Za-z0-9_%])([vas])(?:(\d+)(?![A-Za-z0-9_\[])|\[(\d+):(\d+)\])')

def split_ops(line):
    line = line.split(';')[0].strip()
    p = line.split(None, 1)
    op = p[0]
    if len(p) == 1:
        return op, []
    ops = []; cur = ''; depth = 0
    for ch in p[1]:
        if ch in '[(': depth += 1
        if ch in '])': depth -= 1
        if ch == ',' and depth == 0:
            ops.append(cur.strip()); cur = ''
        else:
            cur += ch
    ops.append(cur.strip())
    return op, ops

def classify(line):
    op, ops = split_ops(line)
    if line.endswith(':') or op.startswith('.'):
        return op, [], []
    if op == '@use': return op, [], ops
    if op == '@def': return op, ops, []
    if op.startswith('@'): return op, [], []
    if op.startswith('v_smfmac'): return op, ops[:1], ops
    if op.startswith('v_mfma'): return op, ops[:1], ops[1:]
    if op.startswith('v_permlane') or op.startswith('v_swap'): return op, ops[:2], ops[:2]
    if op.startswith('v_cmp'): return op, ops[:1], ops[1:]
    if op.startswith('v_nop'): return op, [], []
    if op.startswith('v_'):
        if '_co_' in op or op.startswith('v_div_scale') or op.startswith('v_mad_u64'):
            return op, ops[:2], ops[2:]
        rmw = op.startswith(('v_fmac', 'v_dot2c', 'v_writelane', 'v_pk_fmac'))
        if 'dpp' in op and not ('row_mask:0xf' in line and 'bank_mask:0xf' in line): rmw = True
        if 'UNUSED_PRESERVE' in line: rmw = True
        return op, ops[:1], (ops if rmw else ops[1:])
    if op.startswith(('ds_read', 'ds_bpermute', 'ds_permute', 'ds_swizzle')): return op, ops[:1], ops[1:]
    if op.startswith('ds_'): return op, [], ops
    if op.startswith('buffer_load'):
        if re.search(r'\blds\b', line): return op, [], ops
        if 'd16' in op: return op, ops[:1], ops
        return op, ops[:1], ops[1:]
    if op.startswith('buffer_atomic'):
        if re.search(r'\bsc0\b', line): return op, ops[:1], ops
        return op, [], ops
    if op.startswith('buffer_'): return op, [], ops
    if op.startswith('global_load'):
        if 'lds' in op: return op, [], ops
        return op, ops[:1], ops[1:]
    if op.startswith('global_'): return op, [], ops
    if op.startswith('s_'):
        if op.startswith(('s_cmp', 's_cbranch', 's_branch', 's_waitcnt', 's_nop', 's_barrier', 's_sleep', 's_setprio', 's_endpgm', 's_bitcmp', 's_setreg')):
            return op, [], ops
        return op, ops[:1], ops[1:]
    raise ValueError('unknown instruction: ' + line)

class Alloc:
    def __init__(self, pool, pinned=None):
        self.pool = list(pool); self.size = {}; self.pin = dict(pinned or {}); self.map = {}
    def decl(self, **kw):
        self.size.update(kw)
    def elems(self, s):
        out = []
        for m in VTOK.finditer(s):
            n = m.group(1)
            if n not in self.size: raise KeyError('undeclared vreg ' + n + ' in ' + s)
            if m.group(2) is None: r = range(self.size[n])
            elif m.group(3) is None: r = [int(m.group(2))]
            else: r = range(int(m.group(2)), int(m.group(3)) + 1)
            for i in r:
                assert i < self.size[n], s
                out.append((n, i))
        return out
    def run(self, lines, loop=True, seed=0, tries=60, verbose=False):
        N = len(lines)
        du = []
        for ln in lines:
            op, d, u = classify(ln)
            du.append((op, set(e for x in d for e in self.elems(x)), set(e for x in u for e in self.elems(x))))
        live = set(); occ = {}
        for rnd in range(2 if loop else 1):
            for i in range(N - 1, -1, -1):
                op, d, u = du[i]
                for e in live | d: occ.setdefault(e, set()).add(2 * i + 1)
                live = (live - d) | u
                for e in live: occ.setdefault(e, set()).add(2 * i)
                wide = not (op.startswith('v_') and not op.startswith(('v_mfma', 'v_smfmac', 'v_pk_', 'v_mov_b64')))
                if wide:
                    for e in d: occ.setdefault(e, set()).add(2 * i)
                if op.startswith(('buffer_store', 'global_store')):
                    for e in u:
                        for k in range(1, 6): occ.setdefault(e, set()).add((2 * i + k) % (2 * N))
        self.livein = live
        bits = {e: sum(1 << p for p in s) for e, s in occ.items()}
        names = sorted(set(n for n, _ in bits))
        peak = 0
        base = {}
        for n in names:
            if n in self.pin:
                for i in range(self.size[n]):
                    r = self.pin[n] + i
                    b = bits.get((n, i), 0)
                    assert not (base.get(r, 0) & b), f'pinned overlap {n}'
                    base[r] = base.get(r, 0) | b
        free = [n for n in names if n not in self.pin]
        poolset = set(self.pool)
        rng = random.Random(seed)
        wt = {n: sum(bin(bits.get((n, i), 0)).count('1') for i in range(self.size[n])) for n in free}
        order = sorted(free, key=lambda n: (-self.size[n], -wt[n]))
        B = {n: [bits.get((n, i), 0) for i in range(self.size[n])] for n in free}
        cand0 = {n: [r for r in self.pool if (self.size[n] == 1 or r % 2 == 0) and all((r + i) in poolset for i in range(self.size[n]))] for n in free}
        allb = {n: 0 for n in free}
        for n in free:
            for b in B[n]: allb[n] |= b
        nb = {n: [m for m in free if m != n and allb[m] & allb[n]] for n in free}
        for t in range(tries):
            use = dict(base); mp = {}; budget = [400]
            fits = lambda n, r: not any(use.get(r + i, 0) & b for i, b in enumerate(B[n]))
            pri = {n: rng.random() for n in free}
            def dfs(cands):
                if not cands: return True
                budget[0] -= 1
                if budget[0] < 0: return False
                n = min(cands, key=lambda m: (len(cands[m]) / (self.size[m] ** 0.5), pri[m]))
                cs = list(cands[n])
                if t % 2: cs.reverse()
                if t % 3 == 2: rng.shuffle(cs)
                cs.sort(key=lambda r: (r % 4 != 0) if self.size[n] >= 4 else 0)
                for r in cs:
                    for i, b in enumerate(B[n]): use[r + i] = use.get(r + i, 0) | b
                    nc = {}; ok = True
                    for m in cands:
                        if m == n: continue
                        c = [x for x in cands[m] if fits(m, x)] if allb[m] & allb[n] else cands[m]
                        if not c: ok = False; break
                        nc[m] = c
                    if ok:
                        mp[n] = r
                        if dfs(nc): return True
                    for i, b in enumerate(B[n]): use[r + i] &= ~b
                    if budget[0] < 0: return False
                return False
            if dfs({n: [r for r in cand0[n] if fits(n, r)] for n in free}):
                self.map = dict(self.pin); self.map.update(mp)
                return self.map
        inpool = lambda e: e[0] not in self.pin or (self.pin[e[0]] + e[1]) in poolset
        cnt = [sum(1 for e, b in bits.items() if (b >> p) & 1 and inpool(e)) for p in range(2 * N)]
        open('alloc_fail.txt', 'w').write(''.join(f'{max(cnt[2*q], cnt[2*q+1])} {lines[q]}\n' for q in range(N)))
        p = max(range(2 * N), key=lambda q: cnt[q])
        raise RuntimeError(f'alloc failed; peak {cnt[p]} at "{lines[p//2]}" live: ' + ' '.join(sorted(set(e[0] for e, b in bits.items() if (b >> p) & 1 and inpool(e)))))
    def sub(self, lines):
        def rep(m):
            n = m.group(1); r = self.map[n] if n in self.map else self.pin[n]
            if m.group(2) is None:
                sz = self.size[n]
                return f'v{r}' if sz == 1 else f'v[{r}:{r+sz-1}]'
            if m.group(3) is None: return f'v{r+int(m.group(2))}'
            return f'v[{r+int(m.group(2))}:{r+int(m.group(3))}]'
        return [VTOK.sub(rep, ln) for ln in lines if not ln.startswith(('@use', '@def'))]

def pregs(s):
    out = set()
    for m in PTOK.finditer(s):
        k = m.group(1)
        if m.group(2) is not None: out.add((k, int(m.group(2))))
        else:
            for i in range(int(m.group(3)), int(m.group(4)) + 1): out.add((k, i))
    if re.search(r'\bvcc\b', s): out.add(('s', 'vcc'))
    if re.search(r'\bm0\b', s): out.add(('s', 'm0'))
    if re.search(r'\bexec\b', s): out.add(('s', 'exec'))
    return out

TRANS = ('v_exp_', 'v_log_', 'v_rcp_', 'v_rsq_', 'v_sqrt_', 'v_sin_', 'v_cos_')
def passes(op):
    if '32x32' in op: return 8
    if '16x16' in op: return 4
    raise ValueError(op)

class Ins:
    def __init__(self, line):
        self.line = line
        self.op, d, u = classify(line)
        op = self.op
        self.label = line.endswith(':') or op.startswith('.')
        self.d = set().union(*[pregs(x) for x in d]) if d else set()
        self.u = set().union(*[pregs(x) for x in u]) if u else set()
        self.mfma = op.startswith(('v_mfma', 'v_smfmac'))
        self.valu = op.startswith('v_') and not self.mfma
        self.vmem = op.startswith(('buffer_', 'global_'))
        self.ds = op.startswith('ds_')
        self.salu = op.startswith('s_')
        self.trans = op.startswith(TRANS)
        _, ops = split_ops(line) if not self.label else (None, [])
        self.ops = ops
        if self.mfma:
            self.ab = pregs(ops[1]) | pregs(ops[2])
            if op.startswith('v_smfmac'):
                self.c = pregs(ops[0]); self.ab |= pregs(ops[3].split()[0])
            else:
                self.c = pregs(ops[3].split()[0])
        if self.vmem and re.search(r'\blds\b', line): self.u.add(('s', 'm0'))
        self.slots = int(ops[0]) + 1 if op == 's_nop' else 1

def need(p, c):
    n = 0
    vec = lambda s: {x for x in s if x[0] != 's'}
    sca = lambda s: {x for x in s if x[0] == 's'}
    if p.mfma:
        P = passes(p.op); big = {4: 8, 8: 12}[P]
        if c.mfma:
            if p.d & c.ab: n = max(n, big)
            if p.d & c.c and not (p.d == c.c and passes(c.op) == P): n = max(n, {4: 6, 8: 10}[P])
            if p.d & c.d and not (p.d & c.c) and passes(c.op) < P: n = max(n, big)
        elif (c.valu or c.vmem or c.ds) and (p.d & (c.u | c.d)): n = max(n, big)
        if c.valu and (p.c & c.d): n = max(n, {4: 3, 8: 7}[P])
    if p.valu:
        if c.mfma and (vec(p.d) & (c.ab | c.c)): n = max(n, 2)
        if c.valu and vec(p.d) & c.u:
            if 'dpp' in c.op or c.op.startswith('v_permlane'): n = max(n, 2)
            if c.op.startswith(('v_readlane', 'v_readfirstlane')): n = max(n, 1)
            if p.trans and not c.trans: n = max(n, 1)
            if 'sdwa' in p.op or 'op_sel' in p.line: n = max(n, 1)
        if sca(p.d) & c.u:
            if c.valu: n = max(n, 4 if c.op.startswith(('v_readlane', 'v_writelane', 'v_div_fmas')) else 2)
            if c.vmem: n = max(n, 5)
        if ('s', 'exec') in p.d and (c.mfma or c.valu): n = max(n, 5)
    if p.vmem and ('x3' in p.op or 'x4' in p.op) and 'store' in p.op and vec(p.u) & c.d: n = max(n, 2)
    if p.salu and ('s', 'm0') in p.d and ('s', 'm0') in c.u and c.vmem: n = max(n, 1)
    return n

def fix_hazards(lines, loop=False, timed=True, report=None):
    out = []
    ins = []
    def vhold(x):
        if x.op.startswith('v_smfmac'): return 3
        if x.mfma: return 2 if ('16x16x32' in x.op or '32x32x16' in x.op) else 1
        if x.trans or x.op.startswith('v_permlane'): return 2
        return 1
    def dist(i):
        t = 0; free = 0; vfree = 0
        for j in range(i, len(ins)):
            x = ins[j]
            if timed:
                if x.mfma: t = max(t, free); free = t + passes(x.op)
                if x.valu: t = max(t, vfree)
                if x.mfma or x.valu: vfree = t + vhold(x)
            t += x.slots
        return t, free, vfree
    def process(seq, emit):
        for ln in seq:
            c = Ins(ln)
            if c.label:
                if emit: out.append(ln)
                continue
            add = 0
            for i in range(max(0, len(ins) - 14), len(ins)):
                n = need(ins[i], c)
                if n:
                    t, free, vfree = dist(i)
                    tt = max(t, free) if c.mfma else (max(t, vfree) if c.valu else t)
                    if n <= 2 and i == len(ins) - 1: tt = t
                    if tt < n + 1: add = max(add, n + 1 - t)
            if add:
                if not emit: raise RuntimeError('hazard across back edge at ' + ln)
                if report is not None: report.append((add, ln))
                for x in nopl(add):
                    out.append(x); ins.append(Ins(x))
            if emit: out.append(ln)
            ins.append(c)
    process(lines, True)
    if loop:
        process([l for l in out[:40]], False)
    return out

def auto_waits(lines, loop=False, eager=0):
    def one(seq, lq, vq):
        out = []; nm = 0
        lq = [(x[0], x[1], -99) for x in lq]
        old = lambda: [i for i, x in enumerate(lq) if eager and x[2] <= nm - (eager if x[0] == 'r' else eager + 2)]
        def prefix(ix):
            k = -1
            while k + 1 in ix: k += 1
            return [k] if k >= 0 else []
        for ln in seq:
            if ln.startswith('@ldsdone'):
                idx = [i for i, x in enumerate(lq) if x[0] == 'w']
                if idx:
                    idx = sorted(idx + prefix(set(old()) | set(range(idx[-1] + 1))))
                    n = len(lq) - 1 - idx[-1]
                    out.append(f's_waitcnt lgkmcnt({min(n,15)})'); lq = lq[len(lq) - min(n, 15):]
                continue
            if ln.startswith('@vmdone'):
                out.append('s_waitcnt vmcnt(0)'); vq = []; continue
            if ln.startswith('@forget'):
                vq = [(x[0], set(), x[2]) for x in vq]; continue
            if ln.startswith('@dropvm'):
                vq = vq[:-1]; continue
            if ln.startswith('@mark'):
                if vq: vq[-1] = (vq[-1][0], vq[-1][1], vq[-1][2] | {ln.split()[1]})
                continue
            if ln.startswith('@waitmark'):
                idx = [i for i, x in enumerate(vq) if ln.split()[1] in x[2]]
                if idx:
                    n = len(vq) - 1 - idx[-1]
                    out.append(f's_waitcnt vmcnt({min(n,63)})'); vq = vq[len(vq) - min(n, 63):]
                continue
            c = Ins(ln)
            if c.label:
                out.append(ln); continue
            if c.op == 's_waitcnt':
                m = re.search(r'lgkmcnt\((\d+)\)', ln)
                if m: lq = lq[max(0, len(lq) - int(m.group(1))):]
                m = re.search(r'vmcnt\((\d+)\)', ln)
                if m: vq = vq[max(0, len(vq) - int(m.group(1))):]
                out.append(ln); continue
            if ';nowait' in ln:
                out.append(ln.replace(';nowait', '').strip()); continue
            touch = {x for x in (c.u | c.d) if x[0] != 's'}
            w = []
            usel = c.u if c.ds else touch
            usev = c.u if c.vmem else touch
            idx = [i for i, x in enumerate(vq) if x[1] & usev]
            if idx:
                n = min(len(vq) - 1 - idx[-1], 63); w.append(f'vmcnt({n})'); vq = vq[len(vq) - n:]
            idx = [i for i, x in enumerate(lq) if x[1] & usel]
            if idx:
                idx = sorted(idx + prefix(set(old()) | set(range(idx[-1] + 1))))
                n = min(len(lq) - 1 - idx[-1], 15); w.append(f'lgkmcnt({n})'); lq = lq[len(lq) - n:]
            if w: out.append('s_waitcnt ' + ' '.join(w))
            if c.mfma: nm += 1
            if c.ds: lq = lq + [('r' if c.d else 'w', set(c.d), nm)]
            if c.vmem: vq = vq + [('r' if c.d else 'w', set(c.d), set())]
            out.append(ln)
        return out, lq, vq
    out, lq, vq = one(lines, [], [])
    if loop:
        out, lq, vq = one(lines, list(lq), list(vq))
        out2, _, _ = one(lines, list(lq), list(vq))
        assert out == out2
    return out

def hoist_waits(lines):
    out = list(lines)
    for i in range(len(out) - 1):
        if out[i].startswith('s_waitcnt') and out[i + 1].startswith(('v_mfma', 'v_smfmac')):
            j = i
            while j > 0 and out[j - 1].startswith('v_') and not out[j - 1].startswith(('v_mfma', 'v_smfmac')): j -= 1
            if i - j == 1: out[j], out[i] = out[i], out[j]
    return out

def estimate(lines, marks=()):
    t = 0; mfree = 0; vfree = 0; pkfree = 0; lq = []; ldsfree = 0; res = []
    for ln in lines:
        c = Ins(ln)
        if c.label: res.append((t, ln)); continue
        cost = 4 * c.slots
        if c.mfma:
            t = max(t, mfree, vfree if vfree - t <= 4 else t); mfree = t + 4 * passes(c.op); pkfree = t + 28
            vfree = t + (12 if 'smfmac' in c.op else 8 if ('x32_' in c.op or '32x32x16' in c.op) else 4)
        elif c.valu:
            t = max(t, vfree, pkfree if c.op.startswith('v_pk_') else 0); vfree = t + (8 if (c.trans or 'permlane' in c.op) else 4)
        elif c.ds:
            if c.d:
                cost = 8; t = max(t, ldsfree - 24); ldsfree = max(ldsfree, t) + (16 if '128' in c.op else 8); lq.append(max(t + 56, ldsfree + 36))
            else:
                wide = '128' in c.op; cost = 32 if wide else 16; lq.append(t + (78 if wide else 62))
        elif c.vmem: cost = 12 if 'load' in c.op else 20
        elif c.op == 's_barrier': cost = 8
        elif c.op == 's_waitcnt':
            m = re.search(r'lgkmcnt\((\d+)\)', ln)
            if m:
                n = int(m.group(1))
                if len(lq) > n:
                    t = max(t, max(lq[:len(lq) - n]) - 4); lq = lq[len(lq) - n:]
        res.append((t, ln)); t += cost
    return res
```

```python
from asmlib import *
from layout import *
SRD = {'q': 's[12:15]', 'k': 's[16:19]', 'v': 's[20:23]'}; SRD_M = 's[28:31]'
XN, PARK, MEMU, KMS = 0, 73728, 122880, 132096
sJ, sSEG, sPREV, sC, sXB, sPEND, sBUF = 's34', 's35', 's36', 's37', 's38', 's39', 's40'
sT = ['s41', 's42', 's43', 's44', 's45', 's46']
sONE = 's47'
MASK0 = 48
PIN = dict(vL=0, vMW=1, vMR=2, vK=3, vV=4, vKM=8, vKW=9, vNEG=10)
SIZES = dict(vL=1, vMW=1, vMR=1, vK=1, vV=4, vKM=1, vKW=1, vNEG=1)
def wreg(m, j):
    n = 3 * j + 'qkv'.index(m)
    return ('a', 4 * n) if n < 64 else ('v', 80 + 4 * (n - 64))
def wop(m, j):
    k, r = wreg(m, j); return f'{k}[{r}:{r+3}]'

def raw_dma(vX, seg, tmp, srd_, x8, rawb):
    out = [f's_mul_i32 {tmp}, {seg}, 36864']
    for i in range(9):
        out += [f's_add_u32 m0, {rawb}, {i*1024}', f's_add_u32 {tmp}, {tmp}, {x8}' if i else 's_nop 0', f'buffer_load_dwordx4 {vX}, {srd_}, {tmp} offen sc1 lds']
    return out

def ln_src_setup(p, ln, vX, vXN, x8, rawb, xnbase, rowmajor_if_layer0, t0, t1, sa, sb):
    if rowmajor_if_layer0:
        p(f's_cmp_eq_u32 {sLAYER}, 0', f's_cselect_b32 {sa}, 1152, 16', f's_cselect_b32 {sb}, 16, 512')
    else:
        p(f's_mov_b32 {sa}, 16', f's_mov_b32 {sb}, 512')
    p(f's_lshl_b32 {x8}, {sb}, 3', f's_mul_i32 {rawb}, {sW}, 9216')
    p(f'v_and_b32 {t0}, 7, {ln}', f'v_lshl_add_u32 {t0}, {sW}, 3, {t0}', f'v_lshrrev_b32 {t1}, 3, {ln}')
    p(f'v_mul_lo_u32 {vX}, {t0}, {sa}', f'v_lshlrev_b32 {t0}, 4, {t0}', f'v_lshl_add_u32 {t0}, {t1}, 9, {t0}', f'v_add_u32 {vXN}, {xnbase}, {t0}', f'v_mul_lo_u32 {t1}, {t1}, {sb}', f'v_add_u32 {vX}, {vX}, {t1}')

def ln_code(p, rawb, one, after_reads=(), store=None):
    p(f'v_add_u32 %ra, {rawb}, %vL')
    for i in range(9): p(f'ds_read_b128 %x[{4*i}:{4*i+3}], %ra offset:{i*1024}')
    p('v_mov_b32 %su, 0', 'v_mov_b32 %sq, 0')
    for i in range(36):
        p(f'v_dot2_f32_bf16 %su, %x[{i}], {one}, %su', f'v_dot2_f32_bf16 %sq, %x[{i}], %x[{i}], %sq')
        if i == 33: p(after_reads)
    p('s_nop 2')
    for r in ('su', 'sq'): p(f'v_add_f32_dpp %{r}, %{r}, %{r} row_ror:8 row_mask:0xf bank_mask:0xf')
    for sw in ('16', '32'):
        p('v_mov_b32 %t0, %su', 'v_mov_b32 %t1, %sq', f'v_permlane{sw}_swap_b32 %su, %t0', f'v_permlane{sw}_swap_b32 %sq, %t1', 'v_add_f32 %su, %su, %t0', 'v_add_f32 %sq, %sq, %t1')
    p(f'v_mul_f32 %su, {f32bits(1/576)}, %su', f'v_mul_f32 %sq, {f32bits(1/576)}, %sq', 'v_fma_f32 %sq, -%su, %su, %sq', 'v_max_f32 %sq, 0, %sq', f'v_add_f32 %sq, {f32bits(1e-5)}, %sq')
    p('v_rsq_f32 %rb[0], %sq', 'v_mul_f32 %rb[1], %su, %rb[0]')
    for i in range(36):
        y = f'y{i % 2}'
        p(f'v_lshlrev_b32 %{y}[0], 16, %x[{i}]', f'v_and_b32 %{y}[1], 0xffff0000, %x[{i}]', f'v_pk_fma_f32 %{y}, %{y}, %rb, %rb op_sel:[0,0,1] op_sel_hi:[1,0,1] neg_lo:[0,0,1] neg_hi:[0,0,1]',
          f'v_cvt_pk_bf16_f32 %x[{i}], %{y}[0], %{y}[1]')
        if i % 4 == 3: p(store(i // 4, f'%x[{i-3}:{i}]') if store else f'ds_write_b128 %vXN, %x[{i-3}:{i}] offset:{(i//4)*4096}')
LN_DECL = dict(x=36, ra=1, su=1, sq=1, t0=1, t1=1, rb=2, y0=2, y1=2)

def finish(p, pin, sizes, decl, pool):
    al = Alloc(pool, pin); al.decl(**sizes); al.decl(**decl)
    al.run(p.lines, loop=False)
    extra = {e[0] for e in al.livein} - set(pin)
    assert not extra, extra
    return fix_hazards(auto_waits(al.sub(p.lines)))

def prologue():
    p = Prog()
    P = {k: f'v{v}' for k, v in PIN.items()}
    ln, t0, t1, t2, aD, aT, aTV = 'v60', 'v61', 'v62', 'v63', 'v64', 'v65', 'v66'
    p(f's_sub_u32 {sJ}, {sSLOT}, 32', f's_lshr_b32 {sH}, {sJ}, 2', f's_and_b32 {sJ}, {sJ}, 3', f'v_and_b32 {ln}, 63, v0')
    p(f's_lshl_b32 {sT[0]}, {sH}, 8', f's_lshl_b32 {sT[1]}, {sW}, 6', f's_add_u32 {sT[0]}, {sT[0]}, {sT[1]}')
    p(f'v_lshrrev_b32 {t0}, 2, {ln}', f'v_lshlrev_b32 {t0}, 13, {t0}', f'v_and_b32 {t1}, 3, {ln}', f'v_lshlrev_b32 {t2}, 4, {t1}', f'v_add3_u32 {aD}, {t0}, {t2}, {sT[0]}')
    NS = 8
    p(f's_mul_i32 {sT[2]}, {sW}, {NS*4096}')
    units = [(m, u) for u in range(9) for m in 'kvq']
    def dma(n):
        m, u = units[n]; out = []
        for i in range(4):
            out += [f's_add_u32 m0, {sT[2]}, {(n % NS)*4096 + i*1024}', f's_mov_b32 {sT[3]}, {(64*u + 16*i)*8192}', f'buffer_load_dwordx4 {aD}, {SRD[m]}, {sT[3]} offen lds']
        return out
    for n in range(NS - 1): p(dma(n))
    p(f'v_bfe_u32 {t0}, {ln}, 2, 2', f'v_lshrrev_b32 {t2}, 5, {ln}', f'v_lshl_add_u32 {t0}, {t2}, 3, {t0}', f'v_lshlrev_b32 {t0}, 6, {t0}', f'v_add_u32 {t0}, {sT[2]}, {t0}')
    p(f'v_bfe_u32 {t2}, {ln}, 4, 1', f'v_lshl_add_u32 {aTV}, {t2}, 5, {t0}', f'v_lshl_add_u32 {aTV}, {t1}, 3, {aTV}')
    p(f'v_lshl_add_u32 {aT}, {t2}, 4, {t0}', f'v_and_b32 {t2}, 2, {ln}', f'v_lshl_add_u32 {aT}, {t2}, 4, {aT}', f'v_and_b32 {t2}, 1, {ln}', f'v_lshl_add_u32 {aT}, {t2}, 3, {aT}')
    b = lambda i, d: f'v_bfe_u32 {d}, {ln}, {i}, 1'
    vK = P['vK']
    p(b(1, t0), f'v_lshlrev_b32 {vK}, 10, {t0}', b(4, t0), f'v_lshl_add_u32 {vK}, {t0}, 6, {vK}', b(3, t0), f'v_lshl_add_u32 {vK}, {t0}, 7, {vK}', b(2, t0), f'v_lshl_add_u32 {vK}, {t0}, 5, {vK}',
      b(0, t0), f'v_lshl_add_u32 {vK}, {t0}, 4, {vK}', b(5, t0), f'v_lshl_add_u32 {vK}, {t0}, 8, {vK}')
    p(f'v_and_b32 {t1}, 15, {ln}', f'v_lshl_add_u32 {t1}, {t0}, 4, {t1}', f'v_and_b32 {t2}, 16, {ln}', f'v_cmp_eq_u32 vcc, 0, {t2}')
    for c in range(2):
        p(f'v_add_u32 {t0}, {32*c}, {t1}', f'v_lshlrev_b32 {t2}, 3, {t0}', f'v_lshlrev_b32 {t0}, 4, {t0}')
        p(f'v_add_u32 v67, 2048, {t2}', f'v_add_u32 v68, 2568, {t0}', f'v_cndmask_b32 v{PIN["vV"]+2*c}, v68, v67, vcc')
        p(f'v_add_u32 v67, 2560, {t0}', f'v_add_u32 v68, 3584, {t2}', f'v_cndmask_b32 v{PIN["vV"]+2*c+1}, v68, v67, vcc')
    vKM, vKW, vMW, vMR = P['vKM'], P['vKW'], P['vMW'], P['vMR']
    acc2 = lambda d, terms, base: [f'v_mov_b32 {d}, {base}'] + sum([[f'v_bfe_u32 {t0}, {ln}, {i}, {c}', f'v_lshl_add_u32 {d}, {t0}, {sh}, {d}'] for i, c, sh in terms], [])
    p(f's_lshl_b32 {sT[0]}, {sW}, 10', f's_add_u32 {sT[0]}, {sT[0]}, {MEMU}', acc2(vMW, [(4, 2, 8), (1, 1, 7), (2, 2, 5), (0, 1, 4)], sT[0]))
    p(f's_lshl_b32 {sT[0]}, {sW}, 9', f's_add_u32 {sT[0]}, {sT[0]}, {KMS}', acc2(vKW, [(2, 1, 8), (4, 1, 7), (3, 1, 6), (0, 2, 4), (5, 1, 3)], sT[0]))
    p(acc2(vMR, [(5, 1, 7), (3, 1, 6), (0, 2, 4)], MEMU), b(2, t0), b(4, t1), f'v_xor_b32 {t0}, {t0}, {t1}', f'v_lshl_add_u32 {vMR}, {t0}, 31, {vMR}')
    p(acc2(vKM, [(0, 3, 4), (5, 1, 7)], KMS))
    p(f'v_and_b32 {t1}, 31, {ln}', f'v_lshlrev_b32 {t0}, 2, {t0}', f'v_sub_u32 {t1}, {t1}, {t0}')
    for i in range(16): p(f'v_cmp_le_i32 s[{MASK0+2*i}:{MASK0+2*i+1}], {8*(i//4)+i%4}, {t1}')
    p(f'v_mov_b32 {P["vNEG"]}, {f32bits(-1e9*LOG2E)}', f'v_lshlrev_b32 {P["vL"]}, 4, {ln}', f's_mov_b32 {sC}, {f32bits(LOG2E*DH**-0.5)}')
    for n, (m, u) in enumerate(units):
        p(f's_waitcnt vmcnt({4*(min(26, n + NS - 2) - n)})')
        for jj in range(4):
            k, r = wreg(m, 4 * u + jj)
            for i in range(2): p(f'ds_read_b64_tr_b16 {k}[{r+2*i}:{r+2*i+1}], {aTV if m == "v" else aT} offset:{(n%NS)*4096 + (16*jj+4*i)*64}')
        if n + NS - 1 < 27: p('s_waitcnt lgkmcnt(8)' if n else None, dma(n + NS - 1))
    p('s_waitcnt lgkmcnt(0)', f's_mov_b32 {sSEG}, {sJ}', f's_mov_b32 {sBUF}, {PARK}', f's_mov_b32 {sXB}, 0', f's_mov_b32 {sPEND}, 0')
    return fix_hazards(p.lines, timed=False)

def xn_dma(seg, buf):
    out = [f's_mul_i32 {sT[0]}, {seg}, 36864', f's_mul_i32 {sT[2]}, {sW}, 9216', f's_add_u32 {sT[0]}, {sT[0]}, {sT[2]}', f's_add_u32 {sT[0]}, {sT[0]}, {WS_XN}', f's_add_u32 {sT[2]}, {sT[2]}, {buf}']
    grp = []
    for i in range(9):
        if i % 4 == 0: grp.append([f's_add_u32 m0, {sT[2]}, {i*1024}', f's_add_u32 {sT[3]}, {sT[0]}, {i*1024}'])
        else: grp.append([])
        grp[-1].append(f'buffer_load_dwordx4 v{PIN["vL"]}, {WS}, {sT[3]} offen offset:{(i%4)*1024} sc1 lds')
    return out, grp

def signal_o(lbl):
    return ['s_barrier', f's_cmp_lg_u32 {sW}, 0', f's_cbranch_scc1 {lbl}', f's_cmp_eq_u32 {sPEND}, 0', f's_cbranch_scc1 {lbl}', 'v_mov_b32 v11, 1', 's_mov_b64 exec, 1', f'buffer_atomic_add v11, off, {WS}, {sPEND}', 's_mov_b64 exec, -1', f'{lbl}:']
def signal_kv(lbl):
    return [f's_lshl_b32 {sT[0]}, {sH}, 6', f's_add_u32 {sT[0]}, {sT[0]}, {sSEG}', f's_lshl_b32 {sT[0]}, {sT[0]}, 2', f's_add_u32 {sT[0]}, {sT[0]}, {FL_KV}', 's_waitcnt vmcnt(0) lgkmcnt(0)', 's_barrier',
            f's_cmp_lg_u32 {sW}, 1', f's_cbranch_scc1 {lbl}', f's_cmp_ge_u32 {sSEG}, {NSEG}', f's_cbranch_scc1 {lbl}', 'v_mov_b32 v11, 1', 's_mov_b64 exec, 1', f'buffer_store_dword v11, off, {WS}, {sT[0]} sc1', 's_mov_b64 exec, -1', f'{lbl}:']

def gemm_part():
    p = Prog()
    p(f's_add_u32 {sT[1]}, {sSEG}, {NQREP}', f's_min_u32 {sT[1]}, {sT[1]}, {NSEG-1}', f's_xor_b32 {sT[4]}, {sXB}, 36864')
    pre, grp = xn_dma(sT[1], sT[4])
    NW = 4
    rd = lambda j: f'ds_read_b128 %f{j % NW}, %xa offset:{j*1024}'
    p(f'v_add_u32 %xa, {sXB}, %vL', [rd(j) for j in range(NW - 1)], pre)
    for j in range(36):
        c = lambda a: '0' if j == 0 else a
        p(f'v_mfma_f32_32x32x16_bf16 %ak, {wop("k", j)}, %f{j%NW}, {c("%ak")}', rd(j + NW - 1) if j + NW - 1 < 36 else None)
        p(f'v_mfma_f32_32x32x16_bf16 %av, %f{j%NW}, {wop("v", j)}, {c("%av")}', grp[j] if j < 9 else None, f'v_mfma_f32_32x32x16_bf16 %aq, {wop("q", j)}, %f{j%NW}, {c("%aq")}')
        if j == 12: p('s_waitcnt vmcnt(9)', signal_o('Q_so'), f's_mov_b32 {sPEND}, 0')
    p(f's_lshl_b32 {sT[0]}, {sSEG}, 5', f's_add_u32 {sT[0]}, {sT[0]}, {sH}', f's_lshl_b32 {sT[0]}, {sT[0]}, 2', f's_add_u32 {sT[0]}, {sT[0]}, {sW}', f's_lshl_b32 {sT[0]}, {sT[0]}, 12', f's_add_u32 {sT[0]}, {sT[0]}, {WS_KV}')
    p(f's_mul_i32 {sT[1]}, {sW}, 6144', f's_add_u32 {sT[1]}, {sT[1]}, {sBUF}', f'v_add_u32 %pa, {sT[1]}, %vL')
    for i in range(16): p(f'v_mul_f32 %ak[{i}], {sC}, %ak[{i}]')
    for a, off in (('k', 2048), ('v', 4096), ('q', 0)):
        for c in range(2):
            for u in range(4): p(f'v_cvt_pk_bf16_f32 %b{a}{c}[{u}], %a{a}[{8*c+2*u}], %a{a}[{8*c+2*u+1}]')
            if a == 'k': p(f'buffer_store_dwordx4 %bk{c}, %vK, {WS}, {sT[0]} offen offset:{512*c} sc1')
            if a == 'v': p([f'buffer_store_dwordx2 %bv{c}[{2*u2}:{2*u2+1}], %vV[{2*c+u2}], {WS}, {sT[0]} offen sc1' for u2 in range(2)])
            p(f'ds_write_b128 %pa, %b{a}{c} offset:{off + 1024*c}')
    return finish(p, PIN, SIZES, dict(xa=1, pa=1, ak=16, av=16, aq=16, **{f'f{i}': 4 for i in range(NW)}, **{f'b{a}{c}': 4 for a in 'qkv' for c in range(2)}), list(range(12, 80)))

def attn_part(cfg):
    p = Prog()
    p(f's_xor_b32 {sT[5]}, {sBUF}, {PARK ^ (PARK+24576)}', f'v_add_u32 %pa, {sT[5]}, %vL')
    fr = [(w, c) for w in range(4) for c in range(2)]
    rq = lambda n: f'ds_read_b128 %q{n%3}, %pa offset:{fr[n][0]*6144 + fr[n][1]*1024}'
    rk = lambda n: f'ds_read_b128 %k{n%3}, %pa offset:{fr[n][0]*6144 + 2048 + fr[n][1]*1024}'
    rm = lambda n: f'ds_read_b128 %k{n%3}, %vKM offset:{fr[n][0]*512 + fr[n][1]*256}'
    p(rq(0), rk(0), rq(1), rk(1))
    for n in range(8):
        if n < 6: p(rq(n + 2), rk(n + 2))
        p(f'v_mfma_f32_32x32x16_bf16 %sx, %k{n%3}, %q{n%3}, {"%sx" if n else 0}')
    for i in range(16): p(f'v_cndmask_b32 %sx[{i}], %vNEG, %sx[{i}], s[{MASK0+2*i}:{MASK0+2*i+1}]')
    p('v_max3_f32 %mx, %sx[0], %sx[1], %sx[2]', [f'v_max3_f32 %mx, %mx, %sx[{i}], %sx[{i+1}]' for i in range(3, 15, 2)], 'v_max_f32 %mx, %mx, %sx[15]')
    p(signal_kv('Q_sk'))
    p(f's_lshl_b32 {sT[2]}, {sPREV}, 5', f's_add_u32 {sT[2]}, {sT[2]}, {sH}', f's_lshl_b32 {sT[2]}, {sT[2]}, 2', f's_add_u32 {sT[2]}, {sT[2]}, {sW}', f's_lshl_b32 {sT[2]}, {sT[2]}, 11', f's_add_u32 {sT[2]}, {sT[2]}, {WS_O}')
    p(f's_mul_i32 {sT[0]}, {sPREV}, 9216', f's_add_u32 {sT[3]}, {sT[0]}, {WS_MEMO + 8192}', f's_lshl_b32 {sT[4]}, {sW}, 10', f's_add_u32 {sT[0]}, {sT[0]}, {sT[4]}', f's_add_u32 {sT[0]}, {sT[0]}, {WS_MEMO}', f's_add_u32 {sT[1]}, {sT[0]}, 4096')
    p(f's_add_u32 {sONE}, {sPREV}, 1', f's_bfe_u32 {sONE}, {sONE}, 0x10001', f'v_subrev_u32 %m8, {sT[4]}, %vMW', '@def %m0, %m1, %m2, %c0, %c1', f's_cmp_eq_u32 {sPREV}, 0', 's_cbranch_scc1 Q_m0')
    bud = ['s_sub_u32 s95, s95, 1', 's_cmp_eq_u32 s95, 0', 's_cbranch_scc1 L_end']
    if not cfg.get('nowait'):
        p('Q_mp:', f'buffer_load_dword %c0, off, {WS}, {sT[1]} sc1', bud, 's_waitcnt vmcnt(0)', f'v_xor_b32 %c0, {sONE}, %c0', 'v_and_b32 %c0, 1, %c0', 'v_cmp_ne_u32 vcc, 0, %c0', 's_cbranch_vccz Q_ml', 's_sleep 2', 's_branch Q_mp')
    p('Q_ml:', [f'buffer_load_dwordx4 %m{i}, %vL, {WS}, {sT[(0, 1, 3)[i]]} offen sc1' for i in range(3)], bud, 's_waitcnt vmcnt(0)')
    p(f'v_bitop3_b32 %c0, %m0[0], %m0[2], {sONE} bitop3:0x7e', f'v_bitop3_b32 %c1, %m1[0], %m1[2], {sONE} bitop3:0x7e', 'v_or_b32 %c0, %c0, %c1', f'v_bitop3_b32 %c1, %m2[0], %m2[2], {sONE} bitop3:0x7e',
      'v_bitop3_b32 %c0, %c0, %c1, 1 bitop3:0xa8', 'v_cmp_ne_u32 vcc, 0, %c0', 's_cbranch_vccnz Q_ml' if not cfg.get('nowait') else None, '@use %m0, %m1, %m2', 's_branch Q_mw')
    p('Q_m0:', 'v_bfe_u32 %c0, %vMW, 4, 3', 'v_mul_u32_u24 %c0, 1152, %c0', 'v_bfe_u32 %c1, %vMW, 7, 3', 'v_lshl_add_u32 %c0, %c1, 4, %c0', f's_lshl_b32 {sT[4]}, {sW}, 7')
    p(f'buffer_load_dwordx4 %m0, %c0, {SRD_M}, {sT[4]} offen', f'buffer_load_dwordx4 %m1, %c0, {SRD_M}, {sT[4]} offen offset:512', f'buffer_load_dwordx4 %m2, %c0, {SRD_M}, 0 offen offset:1024', 's_waitcnt vmcnt(0)')
    p('Q_mw:', 'ds_write_b128 %vMW, %m0', 'ds_write_b128 %vMW, %m1 offset:4096', 'ds_write_b128 %m8, %m2 offset:8192', '@ldsdone', 's_barrier')
    NM = 6
    rM = lambda j: f'ds_read_b128 %u{j%NM}, %vMR offset:{j*256}'
    p([rM(j) for j in range(NM - 1)])
    for j in range(36):
        p(f'v_mfma_f32_16x16x32_bf16 %km, {wop("k", j)}, %u{j%NM}, {"%km" if j else 0}', rM(j + NM - 1) if j + NM - 1 < 36 else None, f'v_mfma_f32_16x16x32_bf16 %vf, %u{j%NM}, {wop("v", j)}, {"%vf" if j else 0}')
    p(rq(0), rq(1), [f'v_mul_f32 %km[{i}], {sC}, %km[{i}]' for i in range(4)], 'v_cvt_pk_bf16_f32 %km[0], %km[0], %km[1]', 'v_cvt_pk_bf16_f32 %km[1], %km[2], %km[3]', 'ds_write_b64 %vKW, %km[0:1]')
    p('v_cvt_pk_bf16_f32 %vm[0], %vf[0], %vf[1]', 'v_cvt_pk_bf16_f32 %vm[1], %vf[2], %vf[3]', '@ldsdone', 's_barrier', rm(0), rm(1))
    for n in range(8):
        if n < 6: p(rq(n + 2), rm(n + 2))
        p(f'v_mfma_f32_32x32x16_bf16 %sm, %k{n%3}, %q{n%3}, {"%sm" if n else 0}')
    p(f's_mul_i32 {sT[4]}, {sW}, 6144', f'v_add_u32 %pa, {sT[4]}, %pa', 'ds_read_b128 %v0, %pa offset:4096', 'ds_read_b128 %v1, %pa offset:5120')
    p('v_max3_f32 %mx, %mx, %sm[0], %sm[1]', 'v_max3_f32 %mx, %mx, %sm[2], %sm[3]', 'v_mov_b32 %my, %mx', 'v_permlane32_swap_b32 %mx, %my', 'v_max_f32 %mx, %mx, %my')
    els = [f'%sm[{i}]' for i in range(4)] + [f'%sx[{i}]' for i in range(16)]
    for e in els: p(f'v_sub_f32 {e}, {e}, %mx')
    for e in els: p(f'v_exp_f32 {e}, {e}')
    p('v_cvt_pk_bf16_f32 %pm[0], %sm[0], %sm[1]', 'v_cvt_pk_bf16_f32 %pm[1], %sm[2], %sm[3]')
    for u in range(8): p(f'v_cvt_pk_bf16_f32 %px[{u}], %sx[{2*u}], %sx[{2*u+1}]')
    p('v_mfma_f32_32x32x8_bf16 %o, %vm, %pm, 0', 'v_add_f32 %l, %sm[0], %sm[1]', [f'v_add_f32 %l, %l, {e}' for e in els[2:8]], 'v_mfma_f32_32x32x16_bf16 %o, %v0, %px[0:3], %o',
      [f'v_add_f32 %l, %l, {e}' for e in els[8:14]], 'v_mfma_f32_32x32x16_bf16 %o, %v1, %px[4:7], %o', [f'v_add_f32 %l, %l, {e}' for e in els[14:]])
    p('v_mov_b32 %my, %l', 'v_permlane32_swap_b32 %l, %my', 'v_add_f32 %l, %l, %my', 'v_rcp_f32 %l, %l')
    for c in range(2):
        for i in range(8): p(f'v_mul_f32 %o[{8*c+i}], %o[{8*c+i}], %l')
        for u in range(4): p(f'v_cvt_pk_bf16_f32 %ob{c}[{u}], %o[{8*c+2*u}], %o[{8*c+2*u+1}]')
        p(f'buffer_store_dwordx4 %ob{c}, %vL, {WS}, {sT[2]} offen offset:{1024*c} sc1')
    p(f's_lshl_b32 {sPEND}, {sPREV}, 7', f's_add_u32 {sPEND}, {sPEND}, {FL_O}')
    return finish(p, PIN, SIZES, dict(pa=1, sx=16, sm=16, mx=1, my=1, l=1, k0=4, k1=4, k2=4, v0=4, v1=4, vm=2, pm=2, px=8, o=16, ob0=4, ob1=4, m0=4, m1=4, m2=4, m8=1, c0=1, c1=1, km=4, vf=4,
                                      **{f'q{i}': 4 for i in range(3)}, **{f'u{i}': 4 for i in range(NM)}), list(range(12, 80)))

def main_loop(cfg):
    p = Prog()
    pre, grp = xn_dma(sSEG, sXB)
    p(fix_hazards(pre + sum(grp, []), timed=False), 's_waitcnt vmcnt(0)', 's_barrier')
    p('Q_loop:', f's_cmp_ge_u32 {sSEG}, {NSEG}', 's_cbranch_scc0 Q_gemm', 's_waitcnt vmcnt(0)', signal_o('Q_so2'), 's_branch Q_attn')
    p('Q_gemm:', gemm_part(), f's_cmp_lt_u32 {sSEG}, {NQREP}', 's_cbranch_scc0 Q_attn', signal_kv('Q_sk0'), 's_branch Q_next')
    p('Q_attn:', f's_sub_u32 {sPREV}, {sSEG}, {NQREP}', attn_part(cfg), f's_cmp_ge_u32 {sSEG}, {NSEG}', 's_cbranch_scc0 Q_next', 's_waitcnt vmcnt(0)', signal_o('Q_so3'), 's_branch L_end')
    p('Q_next:', f's_add_u32 {sSEG}, {sSEG}, {NQREP}', f's_xor_b32 {sBUF}, {sBUF}, {PARK ^ (PARK+24576)}', f's_xor_b32 {sXB}, {sXB}, 36864', 's_branch Q_loop')
    return p.lines

def ln_phase():
    p = Prog()
    T = ['s41', 's42', 's43', 's44', 's45', 's46', 's47']
    p(f's_sub_u32 {T[6]}, {sSLOT}, 160', f's_cmp_ge_u32 {T[6]}, {NSEG}', 's_cbranch_scc1 LN_done', 'v_and_b32 v60, 63, v0', 'v_lshlrev_b32 %vL, 4, v60')
    ln_src_setup(p, 'v60', '%vX', '%vXN', T[2], T[3], 0, True, 'v61', 'v62', T[0], T[1])
    p(raw_dma('%vX', T[6], T[0], 's[28:31]', T[2], T[3]), f's_mul_i32 {T[4]}, {T[6]}, 36864', f's_add_u32 {T[4]}, {T[4]}, {WS_XN}', f's_mov_b32 {T[5]}, 0x3f803f80', 's_waitcnt vmcnt(0)')
    ln_code(p, T[3], T[5], store=lambda i, r: [f's_add_u32 {T[0]}, {T[4]}, {i*4096}', f'buffer_store_dwordx4 {r}, %vXN, {WS}, {T[0]} offen sc1'])
    p('s_waitcnt vmcnt(0)', 's_barrier', f's_cmp_lg_u32 {sW}, 0', 's_cbranch_scc1 LN_done', 'v_mov_b32 v4, 1', f's_mov_b32 {T[0]}, 40', 's_mov_b64 exec, 1', f'buffer_atomic_add v4, off, {DBG}, {T[0]}', 's_mov_b64 exec, -1', 'LN_done:')
    return finish(p, dict(vL=1, vX=2, vXN=3), dict(vL=1, vX=1, vXN=1), LN_DECL, list(range(6, 60)))

if __name__ == '__main__':
    print(len(prologue()), len(gemm_part()), len(attn_part({})), len(ln_phase()))
```

```python
from asmlib import *
from layout import *

LDS_W = 36864
LDS_X = 147456
L_MEM, L_SX, L_SM, L_O = 0, 9216, 13312, 14336
SRD = {'q': 's[12:15]', 'k': 's[16:19]', 'v': 's[20:23]', 'o': 's[24:27]'}; SRD_M = 's[28:31]'
sSTEP, sBUD, sTAG = 's34', 's35', 's36'
sA0, sA1, sA2, sAP, sB0, sB1, sB2 = 's37', 's38', 's39', 's40', 's41', 's42', 's43'
sKV, sKV8, sMO, sPB = 's44', 's45', 's46', 's47'
sC = 's48'; sAPO = 's49'; sEVEN = 's[50:51]'; sONE = 's[52:53]'
sT = ['s54', 's55', 's56', 's57']; sM4T = 's[54:55]'
sPX = 's[58:59]'; sRETRY = 's60'; sMASK = 's61'; sM4 = 's[62:63]'; sBIG = 's3'; sKF = 's12'; sCONS = 's13'; sK3 = 's14'; sFL = 's15'; sFP = 's16'; sBO = 's17'; sBO8 = 's18'; sAPO8 = 's19'; sA3 = 's20'; sA4 = 's21'; sAP8 = 's22'; sBS = 's23'; sBS8 = 's24'; sKT = 's25'
PIN = dict(vW=0, vL=1, selT=2, idx=4, aST=5, bST=6, bLD=7, oWR=8, td=9, W=10, FA=28, qk=32, va0=48, va1=52, VB=56)
SIZES = dict(vW=1, vL=1, selT=2, idx=1, aST=1, bST=1, bLD=1, oWR=1, td=1, W=16, FA=4, qk=16, va0=4, va1=4, VB=16)
WB = PIN['W']
POOL = list(range(26, 80))
KW = 1


def slot_ks(w, slot):
    if slot == 0: return w
    if slot == 1: return 4 + w
    if slot == 8: return 8
    if slot < 5: return (w + slot - 1) % 4
    return 4 + (w + slot - 4) % 4

LDS_UNITS = [('q', 0), ('q', 3), ('q', 5), ('k', 8), ('v', 8), ('v', 5), ('o', 0, 0), ('o', 1, 1), ('o', 1, 3)]
REG_UNITS = [u for u in [(m, s) for s in range(9) for m in 'qkv'] + [('o', kk, p) for kk in range(2) for p in range(4)] + [('o', 8)] if u not in LDS_UNITS]
OPREG = {}
for _u in REG_UNITS:
    for _t in range(2):
        _n = len(OPREG); OPREG[(_u, _t)] = ('a', 8 * _n) if _n < 32 else ('v', 80 + 8 * (_n - 32))
assert len(OPREG) == 54
LSLOT = {}

def opnd(u, t):
    if u in LDS_UNITS: return f'%W[{8*t}:{8*t+7}]'
    k, r = OPREG[(u, t)]
    return f'{k}[{r}:{r+7}]'
def wload(w, u, t):
    o = LSLOT[(w, u)] * 4096 + t * 2048
    return [f'ds_read_b128 %W[{8*t}:{8*t+3}], %vW offset:{o}', f'ds_read_b128 %W[{8*t+4}:{8*t+7}], %vW offset:{o+1024}']

def prologue(w, cfg, initwait):
    p = Prog()
    ln, n, g, t0, t1, t2 = 'a', 'b', 'c', 'd', 'e', 'f'
    ln, n, g, t0, t1, t2 = 'v2', 'v3', 'v4', 'v5', 'v6', 'v7'
    aG, aO, aO8, aTR, aTX = 'v8', 'v9', 'v26', 'v27', 'v28'
    vW, vL = 'v0', 'v1'
    b = lambda i, c, d: f'v_bfe_u32 {d}, {ln}, {i}, {c}'
    p(f'v_and_b32 {ln}, 63, v0', f'v_and_b32 {n}, 15, v0', f'v_lshrrev_b32 {g}, 4, {ln}')
    p(f's_mul_i32 {sT[0]}, {sH}, {128*1152}', b(5, 1, t0), f'v_lshlrev_b32 {t0}, 3, {t0}', b(4, 1, t1), f'v_lshl_add_u32 {t0}, {t1}, 1, {t0}', f'v_mul_u32_u24 {t0}, 1152, {t0}', f'v_lshlrev_b32 {t1}, 2, {n}', f'v_add3_u32 {aO}, {t0}, {t1}, {sT[0]}')
    groups = [(0, 0), (1, 0), (0, 1), (1, 1)]
    TB = [30, 80]
    def wo_ld(x):
        kk, G = groups[x]; out = []
        for i in range(8):
            for bb in range(2):
                r = TB[x % 2] + 4 * i + 2 * bb
                out += [f's_mov_b32 {sT[3]}, {(64*kk + 32*(i//4) + 16*bb + 4*(i%2) + (i%4)//2)*1152 + 512*G + 64*w}'] + [f'buffer_load_dword v{r+q}, {aO}, {SRD["o"]}, {sT[3]} offen offset:{256*q}' for q in range(2)]
        return out
    p(wo_ld(0))
    p(f'v_and_b32 {t2}, 3, {ln}', f'v_lshlrev_b32 {t2}, 4, {t2}', b(3, 1, t0), f'v_lshlrev_b32 {t0}, 3, {t0}', f'v_lshl_add_u32 {t0}, {g}, 1, {t0}', b(2, 1, t1), f'v_add_u32 {t0}, {t0}, {t1}')
    p(f's_lshl_b32 {sT[1]}, {sH}, 8', f's_add_u32 {sT[1]}, {sT[1]}, {64*w}', f'v_lshlrev_b32 {t0}, 13, {t0}', f'v_add3_u32 {aG}, {t0}, {t2}, {sT[1]}')
    p(f'v_lshlrev_b32 {t0}, 4, {t1}', b(3, 1, t1), f'v_lshl_add_u32 {t0}, {t1}, 2, {t0}', f'v_add_u32 {t0}, {t0}, {g}', b(1, 1, t1), f'v_lshl_add_u32 {t0}, {t1}, 6, {t0}', f'v_mul_u32_u24 {t0}, 1152, {t0}',
      f'v_and_b32 {t1}, 16, {t2}', f'v_add3_u32 {aO8}, {t0}, {t1}, {sT[0]}')
    p(f'v_lshrrev_b32 {t0}, 2, {n}', f'v_lshl_add_u32 {t0}, {g}, 3, {t0}', f'v_lshlrev_b32 {t0}, 6, {t0}', f'v_lshrrev_b32 {t1}, 1, {t2}', f'v_add_u32 {t0}, {t0}, {t1}', f'v_add_u32 {aTR}, {w*LDS_W}, {t0}', f'v_add_u32 {aTX}, {LDS_X + w*4096}, {t0}')
    p(f'v_lshlrev_b32 {t0}, 4, {ln}', f'v_add_u32 {vW}, {w*LDS_W}, {t0}', f'v_add_u32 {vL}, {LDS_X}, {t0}', f's_mov_b32 {sT[0]}, 0x05040100', f's_mov_b32 {sT[1]}, 0x07060302')
    inv = {slot_ks(w, s): s for s in range(9)}
    order = [('o', 8)] + [(m, inv[ks]) for m in 'vqk' for ks in range(9)]
    ou = [u for u in LDS_UNITS if u[0] == 'o']
    for i, u in enumerate(ou): LSLOT[(w, u)] = i
    free = list(range(len(ou), 10)); where = {}; nxt = [0]
    def issue(limit):
        while nxt[0] < len(order) and nxt[0] <= limit:
            u = order[nxt[0]]
            c = [s for s in free if s != 9] if u in LDS_UNITS else sorted(free, reverse=True)
            if not c: break
            s = c[0]; free.remove(s); where[u] = s
            if u in LDS_UNITS: LSLOT[(w, u)] = s
            for i in range(4):
                p(f's_mov_b32 m0, {(LDS_X + w*4096 if s == 9 else w*LDS_W + s*4096) + i*1024}')
                if u[0] == 'o': p(f's_mov_b32 {sT[3]}, {(32*(i//2) + 8*(i%2))*1152 + 1024 + 32*w}', f'buffer_load_dwordx4 {aO8}, {SRD["o"]}, {sT[3]} offen lds')
                else: p(f's_mov_b32 {sT[3]}, {(64*slot_ks(w, u[1]) + 16*i)*8192}', f'buffer_load_dwordx4 {aG}, {SRD[u[0]]}, {sT[3]} offen lds')
            p(f'@mark u{nxt[0]}'); nxt[0] += 1
    wback = lambda s: [f'ds_write_b128 {vW}, v[{WB+4*q}:{WB+3+4*q}] offset:{s*4096 + q*1024}' for q in range(4)]
    issue(2)
    for x, (kk, G) in enumerate(groups):
        if x < 3: p('s_waitcnt vmcnt(28)', wo_ld(x + 1))
        for tt in range(4):
            u = ('o', kk, 2 * G + tt // 2)
            for i in range(8):
                sw = (i % 2) ^ (tt % 2)
                k, r = ('v', WB + 8 * sw) if u in LDS_UNITS else OPREG[(u, sw)]
                assert k == 'v' and not (80 <= r < 112)
                p(f'v_perm_b32 v{r + (i & ~1) + tt % 2}, v{TB[x%2]+4*i+2+tt//2}, v{TB[x%2]+4*i+tt//2}, {sT[tt%2]}')
            if u in LDS_UNITS and tt % 2: p(wback(LSLOT[(w, u)]))
        if x == 1: issue(4)
    for nu, u in enumerate(order):
        issue(nu + 5)
        s = where[u]
        p(f'@waitmark u{nu}')
        for t in range(2):
            k, r = ('v', WB + 8 * t) if u in LDS_UNITS else OPREG[(u, t)]
            for i in range(4): p(f'ds_read_b64_tr_b16 {k}[{r+2*i}:{r+2*i+1}], {aTX if s == 9 else aTR} offset:{(0 if s == 9 else s*4096) + (4*(i%2)+32*(i//2))*64 + t*32}')
        p('s_waitcnt lgkmcnt(0)')
        if u in LDS_UNITS: p(wback(s))
        else: free.append(s)
    P = {k: f'v{v}' for k, v in PIN.items()}
    p(f'v_mov_b32 v60, {ln}', f'v_mov_b32 v61, {n}', f'v_mov_b32 v62, {g}')
    ln, n, g, t0, t1, t2 = 'v60', 'v61', 'v62', 'v63', 'v64', 'v65'
    p(f'v_and_b32 {t0}, 2, {ln}', f'v_cmp_eq_u32 vcc, 0, {t0}', f'v_mov_b32 {t1}, 0x5e5eeeee', f'v_mov_b32 {t2}, 0x04044444', f'v_cndmask_b32 {P["idx"]}, {t1}, {t2}, vcc')
    p(f's_lshl_b32 {sT[0]}, {sH}, 6', f's_add_u32 {sT[1]}, {sT[0]}, {w*8*2048}', f'v_lshrrev_b32 {t0}, 3, {ln}', f'v_lshlrev_b32 {t0}, 11, {t0}', f'v_and_b32 {t1}, 7, {ln}', f'v_lshlrev_b32 {t1}, 3, {t1}', f'v_add3_u32 {P["aST"]}, {t0}, {t1}, {sT[1]}')
    p(f'v_lshrrev_b32 {t0}, 2, {n}', f'v_lshlrev_b32 {t0}, 8, {t0}', f'v_lshl_add_u32 {t0}, {g}, 6, {t0}', f'v_and_b32 {t1}, 3, {n}', f'v_lshl_add_u32 {P["bLD"]}, {t1}, 4, {t0}')
    p(f'v_and_b32 {t0}, 2, {n}', f'v_lshlrev_b32 {t0}, 4, {t0}', f'v_lshl_add_u32 {t0}, {g}, 4, {t0}', f'v_and_b32 {t1}, 1, {n}', f'v_lshl_add_u32 {t0}, {t1}, 3, {t0}')
    p(f'v_and_b32 {t1}, 0x2c, {ln}', f'v_cmp_eq_u32 vcc, 0, {t1}', f'v_mov_b32 {t1}, 0x7ffff000', f'v_cndmask_b32 {P["bST"]}, {t1}, {t0}, vcc')
    p(f's_bfe_u32 {sT[0]}, {sH}, 0x20001', f's_lshl_b32 {sT[0]}, {sT[0]}, 8', f's_and_b32 {sT[1]}, {sH}, 1', f's_lshr_b32 {sT[2]}, {sH}, 3')
    p(f's_lshl_b32 {sBO8}, {sT[2]}, 1', f's_add_u32 {sBO8}, {sBO8}, {sT[1]}', f's_and_b32 {sBO}, {sBO8}, 3', f's_lshl_b32 {sBO8}, {sBO8}, 5', f's_add_u32 {sBO8}, {sBO8}, {sT[0]}', f's_add_u32 {sBO8}, {sBO8}, 8192')
    p(f's_lshl_b32 {sBO}, {sBO}, 6', f's_add_u32 {sBO}, {sBO}, {sT[0]}', f's_lshr_b32 {sT[2]}, {sT[2]}, 1', f's_lshl_b32 {sT[2]}, {sT[2]}, 10', f's_add_u32 {sBO}, {sBO}, {sT[2]}', f's_add_u32 {sBO}, {sBO}, {2048*w}')
    p(f'v_lshrrev_b32 {t0}, 3, {n}', f'v_lshlrev_b32 {t0}, 8, {t0}', f'v_lshl_add_u32 {t0}, {g}, 6, {t0}', f'v_and_b32 {t1}, 4, {n}', f'v_lshl_add_u32 {t0}, {t1}, 3, {t0}', f'v_and_b32 {t1}, 3, {n}', f'v_lshl_add_u32 {t0}, {t1}, 2, {t0}', f'v_add_u32 {P["oWR"]}, {LDS_X+L_O+512*w}, {t0}')
    p(f'v_and_b32 {t0}, 1, {n}', f'v_lshlrev_b32 {t0}, 4, {t0}', f'v_mov_b32 {t1}, 0x3f80', f'v_lshlrev_b32 {t0}, {t0}, {t1}')
    p(f'v_and_b32 {t1}, 14, {n}', f'v_lshlrev_b32 {t2}, 2, {g}', f'v_cmp_eq_u32 vcc, {t1}, {t2}', f'v_cndmask_b32 v{PIN["selT"]}, 0, {t0}, vcc')
    p(f'v_bfe_u32 {t2}, {ln}, 4, 1', f'v_lshlrev_b32 {t2}, 3, {t2}', f'v_bfe_u32 v66, {ln}, 5, 1', f'v_lshl_add_u32 {t2}, v66, 2, {t2}', f'v_or_b32 {t2}, 2, {t2}', f'v_cmp_eq_u32 vcc, {t1}, {t2}', f'v_cndmask_b32 v{PIN["selT"]+1}, 0, {t0}, vcc')
    p(f'v_lshrrev_b32 {t0}, 2, {n}', f'v_and_b32 {t1}, 1, {n}', f'v_lshl_add_u32 {t0}, {t0}, 1, {t1}', f'v_mul_u32_u24 {t0}, 1152, {t0}', f'v_lshl_add_u32 {t0}, {g}, 5, {t0}', f'v_and_b32 {t1}, 2, {n}', f'v_lshl_add_u32 {t0}, {t1}, 3, {t0}')
    FA, FB, F8 = PIN['FA'], 72, PIN['VB'] + 12
    p(f'buffer_load_dwordx4 v[{FA}:{FA+3}], {t0}, {SRD_M}, 0 offen offset:{128*w}', f'buffer_load_dwordx4 v[{FB}:{FB+3}], {t0}, {SRD_M}, 0 offen offset:{128*(4+w)}', f'buffer_load_dwordx4 v[{F8}:{F8+3}], {t0}, {SRD_M}, 0 offen offset:1024')
    if w == 3: p(f's_lshl_b32 {sB2}, {sH}, 10', f's_add_u32 {sB2}, {sB2}, {WS_SCR + 0x10000}', f'buffer_store_dwordx4 v[{F8}:{F8+3}], {P["bLD"]}, {WS}, {sB2} offen')
    p([re.sub(r'%W\[(\d+):(\d+)\]', lambda m: f'v[{WB+int(m.group(1))}:{WB+int(m.group(2))}]', x).replace('%vW', vW) for x in wload(w, ('q', 0), 0) + wload(w, ('q', 0), 1)])
    for i in range(2): p(f'v_mov_b64 v[{PIN["VB"]+4+2*i}:{PIN["VB"]+5+2*i}], v[{FB+2*i}:{FB+1+2*i}]')
    for i in range(12): p(f'v_mov_b64 v[{PIN["qk"]+2*i}:{PIN["qk"]+1+2*i}], 0')
    p(f's_mov_b32 {sSTEP}, 0', f's_mov_b32 {sBUD}, 20000', f's_mov_b32 {sTAG}, 1', f's_mov_b32 {sRETRY}, 0', f's_mov_b32 {sMASK}, 0', f's_mov_b32 {sBIG}, {f32bits(2.0**60)}', f's_mov_b32 {sCONS}, 0', f's_mov_b32 {sK3}, 0x3f80', f's_mov_b32 {sFL}, {FL_ALIGN}', f's_lshl_b32 {sFP}, {sH}, 2', f's_add_u32 {sFP}, {sFP}, {sFL}')
    p(f's_mov_b32 {sA0}, {WS_RINGA+RINGA_PAR}', f's_mov_b32 {sB0}, {WS_RINGB+RINGB_PAR}', f's_lshl_b32 {sAPO}, {sH}, 11', f's_add_u32 {sAPO}, {sAPO}, {(w*0x10000 - LDS_X) & 0xffffffff}', f's_lshl_b32 {sAPO8}, {sH}, 10', f's_add_u32 {sAPO8}, {sAPO8}, {0x40000 - LDS_X}')
    p(f's_lshl_b32 {sT[0]}, {sH}, 14', f's_add_u32 {sKV}, {sT[0]}, {WS_KV + w*4096 - LDS_X}', f's_add_u32 {sKV8}, {sT[0]}, {WS_KV + w*4096 - LDS_X//2}', f's_add_u32 {sKT}, {sKV}, {H*16384 - 3*LDS_X}')
    p(f's_mov_b32 {sMO}, {WS_MEMO - LDS_X}', f's_cmp_lt_u32 {sH}, 18', f's_cselect_b32 {sPB}, 0, 18', f's_sub_u32 {sPB}, {sH}, {sPB}', f's_lshl_b32 {sPB}, {sPB}, 9', f's_add_u32 {sPB}, {sPB}, {LDS_X//2}')
    p(f's_mov_b32 {sC}, {f32bits(LOG2E*DH**-0.5)}', 's_mov_b32 s50, 0x33333333', 's_mov_b32 s51, 0x33333333', 's_mov_b32 s52, 0x3f803f80', 's_mov_b32 s53, 0x3f803f80', 's_mov_b32 s62, 0x11111111', 's_mov_b32 s63, 0x11111111')
    p(f's_lshl_b32 {sKF}, {sH}, 8', f's_add_u32 {sKF}, {sKF}, {FL_KV}', f's_mov_b32 m0, {LDS_X + L_SX + 1024*w - 1024}', 's_waitcnt vmcnt(0) lgkmcnt(0)')
    out = fix_hazards(auto_waits(p.lines), timed=False) + initwait
    if not cfg.get('nowait'): out += poll_ge(f'T{w}_kv0', WS, sKF, 1, 1, 'v78') + [f's_add_u32 {sKF}, {sKF}, 4'] + poll_ge(f'T{w}_kv1', WS, sKF, 1, 1, 'v78') + [f's_add_u32 {sKF}, {sKF}, 4']
    return out

def fast_loads():
    return ['v_lshrrev_b32 %l8, 1, %vL', f'buffer_load_dwordx4 %FA, %vL, {WS}, {sKV} offen sc1', f'buffer_load_dwordx4 %vL, {WS}, {sKV} offen offset:1024 sc1 lds', f'buffer_load_dwordx4 %VB[4:7], %vL, {WS}, {sKV} offen offset:2560 sc1',
            f'buffer_load_dwordx2 %VB[0:1], %l8, {WS}, {sKV8} offen offset:2048 sc1', f'buffer_load_dwordx2 %VB[10:11], %l8, {WS}, {sKV8} offen offset:3584 sc1']

def epilogue(cfg):
    if not cfg.get('trace'): return ['s_memtime s[28:29]', 's_waitcnt lgkmcnt(0)', 's_sub_u32 s94, s28, s26'] if cfg.get('stat') else []
    return [f's_lshl_b32 s72, {sH}, 2', f's_add_u32 s72, s72, {sW}', 's_lshl_b32 s72, s72, 8', f's_add_u32 s72, s72, {WS_SCR - LDS_X//4}', 'v_lshrrev_b32 v78, 2, v1', f'buffer_store_dword v79, v78, {WS}, s72 offen']

def body(w, cfg):
    P = f'T{w}'
    g = cfg.get
    p = Prog(); tails = Prog()
    SM = lambda acc, A, B, mod='': f'v_smfmac_f32_16x16x64_bf16 {acc}, {A}, {B}, %idx {mod}'.strip()
    acc = {('q', 0): '%qk[0:3]', ('k', 0): '%qk[4:7]', ('q', 1): '%qk[8:11]', ('k', 1): '%qk[12:15]', ('v', 0): '%va0', ('v', 1): '%va1'}
    FN = {0: '%FA', 1: '%VB[4:7]'}; FN.update({s: f'%f{s}' for s in range(2, 9)})
    MM = lambda m, t, slot: SM(acc[(m, t)], FN[slot], opnd((m, slot), t))
    frd = lambda slot: f'ds_read_b128 {FN[slot]}, %vL offset:{L_MEM + slot_ks(w, slot)*1024}'
    WL = lambda u: wload(w, u, 0) + wload(w, u, 1)
    retry = lambda lbl, m=31, inc=1: [f'{lbl}:', f's_add_u32 {sRETRY}, {sRETRY}, {inc}' if g('stat') else None, f's_add_u32 {sCONS}, {sCONS}, 1', f's_and_b32 {sT[2]}, {sCONS}, {m}', f's_cbranch_scc1 {lbl}_nw',
                         f's_sub_u32 {sBUD}, {sBUD}, 1', f's_cmp_eq_u32 {sBUD}, 0', 's_cbranch_scc1 L_end', 'buffer_wbl2 sc1', 's_waitcnt vmcnt(0)', 'buffer_inv sc1', f'{lbl}_nw:']
    Z16 = lambda r: f'v_mfma_f32_16x16x16_bf16 {r}, %z, %z, 0'
    def halves(dst, a, o):
        return [f'v_add_f32 %{a}[{o}], %{a}[{o}], %{a}[{o+2}]', f'v_add_f32 %{a}[{o+1}], %{a}[{o+1}], %{a}[{o+3}]', f'v_cvt_pk_bf16_f32 {dst}, %{a}[{o}], %{a}[{o+1}]']
    ck2 = lambda d, a, b: f'v_bitop3_b32 {d}, {a}, {b}, {sTAG} bitop3:0x7e'
    ldFA = f'buffer_load_dwordx4 %FA, %bLD, {WS}, {sB0} offen offset:{1024*w} sc1'
    F8 = '%VB[12:15]'
    ldFB = [f'buffer_load_dwordx4 %VB[4:7], %bLD, {WS}, {sB1} offen offset:{1024*w} sc1']
    ldF8 = f'buffer_load_dwordx4 {F8}, %bLD, {WS}, {sB2} offen sc1'
    NT = g('NT', 2); nb = len(ldFB)
    cA = [ck2('%c0', '%FA[0]', '%FA[2]') + ' ;nowait', 'v_and_b32 %c0, 1, %c0', 'v_cmp_ne_u32 vcc, 0, %c0']
    p(f'{P}_chk:', f's_waitcnt vmcnt({NT*(nb+1)-1})', cA, f's_cbranch_vccnz {P}_br', f'{P}_head:', '@forget')
    tails(f'{P}_br:', ldFA, ldFB, retry(f'{P}_brq', 63), f's_branch {P}_chk')
    qk4 = lambda s: [(m, t, s) for m in 'qk' for t in (0, 1)]
    seq = sum([qk4(s) for s in range(6)], []) + [('q', 0, 6), ('q', 0, 7), ('k', 0, 6), ('k', 0, 7), ('q', 0, 8), ('k', 0, 8)] + [(m, 1, s) for m in 'qk' for s in (6, 7, 8)]
    N = len(seq)
    fill = {i: [] for i in range(N)}
    def put(i, *xs):
        for x in xs: fill[i] += [y for y in x if y] if isinstance(x, list) else ([x] if x else [])
    put(0, f'ds_write_b128 %vL, %FA offset:{L_MEM + w*1024}')
    cB = [ck2('%c0', '%VB[4]', '%VB[6]'), f'v_and_b32 %c0, {sMASK}, %c0', 'v_cmp_ne_u32 vcc, 0, %c0']
    heavy = {0}
    def hput(i, *xs): put(i, *xs); heavy.add(i)
    hput(3, f's_waitcnt vmcnt({(NT-1)*(nb+1)})', cB[0], MM('v', 0, 0), '@ldsdone', cB[1:], MM('v', 1, 0), f's_cbranch_vccnz {P}_b1r', '@use %c0', f'{P}_b1c:', 's_barrier')
    tails(f'{P}_b1r:', ldFB, retry(f'{P}_b1q', 127, 0x10000), f's_waitcnt vmcnt({(NT-1)*nb})', cB, f's_cbranch_vccnz {P}_b1r', f's_branch {P}_b1c')
    hput(4, frd(2)); hput(5, f'ds_write_b128 %vL, %VB[4:7] offset:{L_MEM + (4+w)*1024}')
    hput(11, '@ldsdone', 's_barrier'); hput(23, '@ldsdone', 's_barrier'); hput(24, frd(8))
    if w == 3:
        c8 = [ck2('%c0', '%VB[12]', '%VB[14]'), f'v_and_b32 %c0, {sMASK}, %c0', 'v_cmp_ne_u32 vcc, 0, %c0']
        put(4, ldF8)
        hput(19, f's_cbranch_vccnz {P}_b8r', '@use %c0', f'{P}_b8c:', f'ds_write_b128 %vL, {F8} offset:{L_MEM + 8192}')
        tails(retry(f'{P}_b8r', 31, 0x10000), ldF8, 's_waitcnt vmcnt(0)', c8, f's_cbranch_vccnz {P}_b8r', f's_branch {P}_b8c')
    fl = fast_loads()
    vslots = [i for i in range(6, 36) if i not in (11, 19, 23, 24)]
    mine = vslots[w::4]
    for i in range(5): hput(mine[i], {0: '@use %FA', 2: '@use %VB[4:7]'}.get(i), fl[1 + i], f'@mark k{i}')
    tp = mine[5]
    items = [(4*s - 8 if s < 5 else max(12, 4*s - 8), 4*s - 4, [frd(s)]) for s in (3, 4, 5)] + [(16, 20, [frd(6)]), (20, 21, [frd(7)])]
    for u, nu in (((('q', 0)), ('q', 3)), (('q', 3), ('q', 5)), (('q', 5), ('k', 8)), (('k', 8), ('v', 8))):
        for tt in range(2):
            e = seq.index((u[0], tt, u[1])); dl = seq.index((nu[0], tt, nu[1])) - 4 if nu[0] != 'v' else 35
            if e < 35: items += [(e, dl - 1, wload(w, nu, tt)[:1]), (e, dl, wload(w, nu, tt)[1:])]
    items += [(33, 34, ['@waitmark k1', f'ds_read_b128 %kx1, %vL offset:{L_SX + w*1024}'])]
    if w == 2: items += [(25, 30, ['ds_read_b64 %pb, %pa'])]
    for e, dl, xs in sorted(items, key=lambda x: (x[1], x[0])):
        c = [i for i in range(e, dl + 1) if i not in heavy]
        i = c[0] if c else dl
        if not c and g('verbose'): print('overfull', w, dl, xs)
        fill[i] = xs + fill[i]; heavy.add(i)
    vfree = lambda a, b: [i for i in range(a, b) if i not in mine and i not in (11, 19, 23)]
    put(vfree(mine[2], mine[3])[0], fl[0])
    if w == 3:
        for i, x in zip(vfree(15, 19)[-3:], c8): put(i, x)
    w8 = WL(('v', 8))
    fw = g('fwave', 0)
    if g('flag', 0):
        fc = g('fc', 26); tp = max(24, fc + 3) + w
        if w == fw:
            fld = f'buffer_load_dword %fl, %fa, {WS}, {sFL} offen sc1'
            put(2, f'v_add_u32 %fs, {sSTEP}, 1'); fill[4] = ['s_mov_b64 exec, 1', f'buffer_store_dword %fs, off, {WS}, {sFP}', 's_mov_b64 exec, -1'] + fill[4]
            put(4, 'v_bfe_u32 %fa, %vL, 4, 5'); put(5, 'v_lshlrev_b32 %fa, 2, %fa'); put(6, 'v_mov_b32 %fl, 0')
            for i in range(max(7, fc - 14 + (fc % 2 == 0)), fc + 2, 2): put(i, '@use %fl', fld)
            put(fc, f'v_cmp_ge_u32 {sPX}, {sSTEP}, %fl ;nowait'); put(fc + 1, f's_mov_b32 {sT[3]}, 40')
            put(fc + 2, f's_cmp_eq_u64 {sPX}, 0', f's_cbranch_scc1 {P}_fc', f'{P}_fr:', '@use %fl', fld, '@mark fl', f'v_cmp_ge_u32 {sPX}, {sSTEP}, %fl ;nowait', 's_add_u32 s89, s89, 1' if g('stat') else None,
                f's_sub_u32 {sT[3]}, {sT[3]}, 1', f's_cbranch_scc1 {P}_fc', f's_cmp_lg_u64 {sPX}, 0', f's_cbranch_scc1 {P}_fr', f'{P}_fc:', '@dropvm')
        put(fc + 2, 's_barrier')
    slow = [None, None]
    if g('touch', 1): put(mine[4], 'v_lshlrev_b32 %l8, 2, %vL') if w == 3 else put(mine[4] + 1, 'v_lshlrev_b32 %l8, 2, %vL'); slow[0] = f'buffer_load_dword %td, %l8, {WS}, {sKT} offen sc1'
    if w == KW and not g('nowait'): slow[1] = f'buffer_load_dword %td, off, {WS}, {sKF} sc1'
    if w == 2:
        put(vfree(mine[2], mine[3])[1], f'v_add_u32 %pa, {sPB}, %l8')
        slow[1] = f'buffer_store_dwordx2 %pb, %pa, {WS}, {sMO} offen sc1'
    upd = [f's_xor_b32 {sA0}, {sA0}, {WS_RINGA ^ (WS_RINGA+RINGA_PAR)}', f's_bfe_u32 {sTAG}, {sSTEP}, 0x10001', f's_xor_b32 {sTAG}, {sTAG}, 1', f's_add_u32 {sA4}, {sA0}, 0x40000', f's_add_u32 {sA1}, {sA0}, 0x10000',
           f's_add_u32 {sA2}, {sA0}, 0x20000', f's_add_u32 {sA3}, {sA0}, 0x30000', f's_add_u32 {sAP}, {sA0}, {sAPO}', f's_add_u32 {sAP8}, {sA0}, {sAPO8}']
    for i, x in zip(range(30, 36), halves('%Y0[0]', 'qk', 0) + halves('%Y0[1]', 'qk', 4)): put(i, x)
    hq, hk = halves('%Y1[0]', 'qk', 8), halves('%Y1[1]', 'qk', 12)
    for i, x in enumerate(seq): p(MM(*x), fill[i])
    for s in range(6): FN[s] = f'%g{s}'
    V = lambda t, s: MM('v', t, s)
    zo = [f'v_mov_b64 %O[{2*i}:{2*i+1}], 0' for i in range(4)]
    p(hq[:2], 'v_mfma_f32_16x16x16_bf16 %T0, %Y0, %selT, 0', hq[2], f's_cmp_eq_u32 {sSTEP}, {NSEG-1}', hk, w8[3], f's_mov_b64 vcc, {sEVEN}')
    p('v_mfma_f32_16x16x16_bf16 %T1, %Y1, %selT, 0', 'v_cvt_pk_bf16_f32 %X[0], %T0[0], %T0[1]', 'v_cvt_pk_bf16_f32 %X[1], %T0[2], %T0[3]', V(0, 6), w8[2], V(1, 6), frd(1))
    p('v_cvt_pk_bf16_f32 %X[2], %T1[0], %T1[1]', 'v_cvt_pk_bf16_f32 %X[3], %T1[2], %T1[3]')
    p('v_mfma_f32_16x16x32_bf16 %Sm, %X, %X, 0', slow[0], 'v_mfma_f32_16x16x32_bf16 %S0, %FA, %X, 0', slow[1], 'v_mfma_f32_16x16x32_bf16 %S1, %kx1, %X, 0', 's_cbranch_scc1 L_team_done')
    dpp = 'quad_perm:[0,1,0,1] row_mask:0xf bank_mask:0xf'
    p(f'v_cndmask_b32_dpp %sm, %Sm[3], %Sm[2], vcc {dpp}', f'v_mul_f32 %sm, {sC}, %sm', V(0, 7), f'ds_write_b32 %vL, %sm offset:{L_SM + w*4}', V(1, 7), frd(2))
    for i in range(4): p(f'v_cndmask_b32_dpp %S0[{i}], %S1[{i}], %S0[{i}], vcc {dpp}')
    w3v = WL(('v', 5)); wo = WL(('o', 0, 0))
    p(f'ds_write_b128 %vL, %S0 offset:{L_SX + w*1024}', V(0, 8), frd(3), V(1, 8), w3v[0], 'v_mov_b64 %z, 0', V(0, 1))
    if g('flag', 0) and w == fw: p('@use %fl')
    rd = [f'ds_read_b128 %R{i}, %vL offset:{L_SX + ((w+1+i)%4)*1024}' for i in range(3)]
    p('@ldsdone', 's_barrier', f'ds_read_b128 %Rm, %vL offset:{L_SM}', V(1, 1), rd[0], rd[1], V(0, 2), rd[2], frd(4), V(1, 2), frd(5), V(0, 3), w3v[1], 'v_add_f32 %Rm[0], %Rm[0], %Rm[1]', V(1, 3), w3v[2])
    p('v_add_f32 %Rm[2], %Rm[2], %Rm[3]', [f'v_add_f32 %S0[{i}], %S0[{i}], %R0[{i}]' for i in range(2)], V(0, 4), w3v[3], [f'v_add_f32 %S0[{i}], %S0[{i}], %R0[{i}]' for i in range(2, 4)], V(1, 4))
    p('v_add_f32 %sm2, %Rm[0], %Rm[2]', 'v_add_f32 %R1[0], %R1[0], %R2[0]', V(0, 5), wo[0], 'v_add_f32 %R1[1], %R1[1], %R2[1]', 'v_add_f32 %R1[2], %R1[2], %R2[2]', V(1, 5), wo[1], 'v_add_f32 %R1[3], %R1[3], %R2[3]')
    p('v_exp_f32 %em, %sm2', 'v_mov_b32 %Pa[3], 0', 'v_pk_add_f32 %S0[0:1], %S0[0:1], %R1[0:1]', 'v_pk_add_f32 %S0[2:3], %S0[2:3], %R1[2:3]', 'v_cvt_pk_bf16_f32 %Pa[1], %em, 0')
    p('v_pk_add_f32 %va0[0:1], %va0[0:1], %va0[2:3]', 'v_pk_add_f32 %va1[0:1], %va1[0:1], %va1[2:3]', Z16('%O[0:3]'), 'v_exp_f32 %E[0], %S0[0]', 'v_exp_f32 %E[1], %S0[1]', Z16('%O[4:7]'), 'v_permlane32_swap_b32 %Pa[1], %Pa[3]', 'v_exp_f32 %E[2], %S0[2]', 'v_exp_f32 %E[3], %S0[3]')
    p(f'v_mov_b64 %VB[12:13], {sONE}', f'v_mov_b64 %VB[14:15], {sONE}')
    p('v_cvt_pk_bf16_f32 %Pa[0], %E[0], %E[1]', 'v_cvt_pk_bf16_f32 %Pa[2], %E[2], %E[3]', 'v_cvt_pk_bf16_f32 %VB[2], %va0[0], %va0[1]', 'v_cvt_pk_bf16_f32 %VB[8], %va1[0], %va1[1]')
    pv = ['v_mfma_f32_16x16x32_bf16 %Ls, %Pa, %VB[12:15], 0', SM('%O[0:3]', '%Pa', '%VB[0:7]', 'abid:1'), SM('%O[4:7]', '%Pa', '%VB[6:13]', 'abid:1')]
    lsum = ['v_add_f32 %Ls[0], %Ls[0], %Ls[2]', 'v_add_f32 %Ls[1], %Ls[1], %Ls[3]', 'v_rcp_f32 %Ls[2], %Ls[0]', 'v_rcp_f32 %Ls[3], %Ls[1]']
    p('@def %VB[3], %VB[9]', pv[0], '@waitmark k4', wo[2], pv[1], wo[3], pv[2], lsum)
    post = ['v_pk_add_f32 %O[0:1], %O[0:1], %O[2:3]', 'v_pk_add_f32 %O[4:5], %O[4:5], %O[6:7]', 'v_pk_mul_f32 %O[0:1], %O[0:1], %Ls[2:3]', 'v_pk_mul_f32 %O[4:5], %O[4:5], %Ls[2:3]',
            'v_cvt_pk_bf16_f32 %O[2], %O[0], %O[4]', 'v_cvt_pk_bf16_f32 %O[3], %O[1], %O[5]', 'ds_write2_b32 %oWR, %O[2], %O[3] offset0:0 offset1:4']
    p(post)
    p(Z16('%C0'), 'v_max3_f32 %mx, %Ls[0], %Ls[1], %Ls[2]', 'v_max_f32 %mx, %mx, %Ls[3]', f'v_cmp_nle_f32 vcc, %mx, {sBIG}', Z16('%C4'), 'v_xor_b32 %ax, 32, %vL', upd[:2], Z16('%C1'), upd[2],
      f's_cbranch_vccnz {P}_sr', '@use %S0, %sm2, %VB, %O, %Ls, %Pa', f'{P}_sc:')
    fb = Prog()
    mx, my = '%Ls[0]', '%Ls[1]'
    fb(f'{P}_sr:', 's_nop 7', f'v_max3_f32 {mx}, %S0[0], %S0[1], %S0[2]', f'v_max3_f32 {mx}, {mx}, %S0[3], %sm2', f'v_max_f32_dpp {mx}, {mx}, {mx} quad_perm:[2,3,0,1] row_mask:0xf bank_mask:0xf')
    fb(f'v_mov_b32 {my}, {mx}', f'v_permlane16_swap_b32 {mx}, {my}', f'v_max_f32 {mx}, {mx}, {my}', f'v_mov_b32 {my}, {mx}', f'v_permlane32_swap_b32 {mx}, {my}', f'v_max_f32 {mx}, {mx}, {my}')
    fb([f'v_sub_f32 %S0[{i}], %S0[{i}], {mx}' for i in range(4)], f'v_sub_f32 %sm2, %sm2, {mx}', [f'v_exp_f32 %S0[{i}], %S0[{i}]' for i in range(4)], 'v_exp_f32 %sm2, %sm2')
    fb('v_cvt_pk_bf16_f32 %Pa[0], %S0[0], %S0[1]', 'v_cvt_pk_bf16_f32 %Pa[2], %S0[2], %S0[3]', 'v_cvt_pk_bf16_f32 %Pa[1], %sm2, 0', 'v_mov_b32 %Pa[3], 0', 'v_permlane32_swap_b32 %Pa[1], %Pa[3]')
    fb([f'v_mov_b64 %O[{2*i}:{2*i+1}], 0' for i in range(4)], pv, lsum, post, 's_waitcnt lgkmcnt(0)', f's_branch {P}_sc')
    p('@ldsdone', 's_barrier', f'ds_read_b128 %A00, %vL offset:{L_O}', f'ds_read_b128 %A10, %vL offset:{L_O+1024}', Z16('%C2'), f'ds_read_b128 %A01, %ax offset:{L_O}', f'ds_read_b128 %A11, %ax offset:{L_O+1024}', Z16('%C3'),
      'v_lshrrev_b32 %a2, 1, %aST', upd[3])
    tagf = lambda r: f'v_bfi_b32 {r}, 1, {sTAG}, {r}'
    w3 = WL(('o', 1, 3))
    mms = [SM('%C4', f'%A{kk}0', opnd(('o', 8), kk)) for kk in range(2)] + [SM(f'%C{q}', f'%A{kk}{sw}', opnd(('o', kk, q), sw)) for q in range(4) for sw in range(2) for kk in range(2)]
    cv = lambda q: [f'v_cvt_pk_bf16_f32 %G{q}[0], %C{q}[0], %C{q}[1]', f'v_cvt_pk_bf16_f32 %G{q}[1], %C{q}[2], %C{q}[3]', tagf(f'%G{q}[0]'), f'buffer_store_dwordx2 %G{q}, %aST, {WS}, {(sA0, sA1, sA2, sA3)[q]} offen']
    h8 = halves('%G4', 'C4', 0) + [tagf('%G4'), f'buffer_store_dword %G4, %a2, {WS}, {sA4} offen']
    w1 = WL(('o', 1, 1))
    side = {0: upd[4:7], 1: upd[7:], 2: [w1[0]], 3: [w1[1]] + h8[:2], 4: [w1[2]] + h8[2:3], 5: [w1[3]] + h8[3:4], 6: h8[4:], 17: cv(3)}
    for q in range(3):
        c = cv(q); side[7 + 4*q] = c[:1]; side[8 + 4*q] = c[1:2]; side[9 + 4*q] = c[2:3] + side.get(9 + 4*q, [])
        if q < 2: side[10 + 4*q] = c[3:]
        else: side[17].insert(1, c[3])
    for i, x in zip((7, 8, 9, 11), w3): side[i].insert(0, x)
    ld8 = f'buffer_load_dwordx4 %Z8, %vL, {WS}, {sAP8} offen sc1'
    for i, x in enumerate(mms): p(x, side.get(i))
    hmode = g('heat', 'nnnm')[w]
    rot = [-1]
    def heat(n, extra=(), zero=()):
        out = []; extra = list(extra); zero = list(zero)
        for k in range(n):
            ex = extra[:2]; extra = extra[2:]
            if zero: out += [Z16(zero.pop(0))] + ex
            elif hmode == 'm' and rot[0] >= 0: out += [Z16(f'%qk[{4*(rot[0]%4)}:{4*(rot[0]%4)+3}]')] + ex; rot[0] += 1
            elif hmode == 'm': out += ['@def %hd', 'v_mfma_f32_16x16x16_bf16 %hd, %z, %z, %hd'] + ex
            else: out += ex + nopl(4 - len(ex))
        assert not zero
        return out + extra
    upd2 = [f's_xor_b32 {sB0}, {sB0}, {RINGB_PAR}', f's_add_u32 {sBS}, {sB0}, {sBO}', f's_add_u32 {sBS8}, {sB0}, {sBO8}', f's_add_u32 {sB1}, {sB0}, 4096', f's_add_u32 {sB2}, {sB0}, 8192', f's_mov_b32 {sMASK}, 1', f's_mov_b32 {sCONS}, 0',
            f's_add_u32 {sKV}, {sKV}, {H*16384}', f's_add_u32 {sKV8}, {sKV8}, {H*16384}', f's_add_u32 {sKT}, {sKV}, {H*16384 - 3*LDS_X}', f's_add_u32 {sMO}, {sMO}, 9216', f's_add_u32 {sSTEP}, {sSTEP}, 1'] + ([f's_cmp_lg_u32 {sSTEP}, 4', f's_cbranch_scc1 {P}_ns', 's_memtime s[26:27]', f'{P}_ns:'] if g('stat') else [])
    wk = WL(('q', 0))
    ldA = lambda s: [f'buffer_load_dwordx4 %Z{2*s+j}, %vL, {WS}, {sAP} offen offset:{1024*j} sc1' for j in range(2)]
    two = g('two', 1)
    sel = ['v_bfe_u32 %selV, %vL, 6, 1', 'v_lshlrev_b32 %selV, 4, %selV', f'v_lshlrev_b32 %selV, %selV, {sK3}'] + sum([[f's_lshl_b64 {sM4T}, {sM4}, {t}', f'v_cndmask_b32 %selR[{t}], 0, %selV, {sM4T}'] for t in range(4)], [])
    def core(Z):
        mm = [f'v_mfma_f32_16x16x32_bf16 %Rd, %selR, {z}, {"%Rd" if j else 0}' for j, z in enumerate(Z)]
        return [mm[0], ck2('%c0', f'{Z[0]}[0]', f'{Z[0]}[2]'), mm[1], ck2('%c1', f'{Z[1]}[0]', f'{Z[1]}[2]'), 'v_bitop3_b32 %c0, %c0, %c1, 1 bitop3:0xa8', 'v_cmp_ne_u32 vcc, 0, %c0']
    def fin(L, R, rors, adr, so):
        d = [f'v_add_f32_dpp %{R}[{r}], %{R}[{r}], %{R}[{r}] row_ror:{ror} row_mask:0xf bank_mask:0xf' for ror in rors for r in range(4)]
        st = f'buffer_store_dwordx2 %{R}[0:1], {adr}, {WS}, {so} offen'
        tails(f'{L}l:', st + ' sc1', f's_branch {L}m')
        return d + [f'v_cvt_pk_bf16_f32 %{R}[0], %{R}[0], %{R}[1]', f'v_cvt_pk_bf16_f32 %{R}[1], %{R}[2], %{R}[3]', tagf(f'%{R}[0]'), st, f's_cmp_eq_u32 {sSTEP}, {NSEG-1}', f's_cbranch_scc1 {L}l', f'@use %{R}[0:1], {adr}', f'{L}m:']
    def red(L):
        m8 = ['v_mfma_f32_16x16x32_bf16 %R8, %selR, %Z8, 0', ck2('%c2', '%Z8[0]', '%Z8[1]'), ck2('%c1', '%Z8[2]', '%Z8[3]'), 'v_bitop3_b32 %c2, %c2, %c1, 1 bitop3:0xa8', f'v_cmp_ne_u32 {sPX}, 0, %c2']
        o = [f'{L}c:'] + core(['%Z0', '%Z1']) + (m8 if w == 0 else ['s_nop 2']) + [f's_cbranch_vccnz {L}r', '@use %selR, %c0, %c1, %Z0, %Z1', f'{L}d:'] + fin(L, 'Rd', (8, 4), '%bST', sBS)
        if w == 0:
            o += [f's_cmp_lg_u64 {sPX}, 0', f's_cbranch_scc1 {L}8r', '@use %selR, %c1, %c2, %Z8', f'{L}8d:'] + fin(L + '8', 'R8', (8, 4, 2), '%b8', sBS8)
            fb(f'{L}8r:', 's_waitcnt vmcnt(1)', m8, 's_nop 3', f's_cmp_lg_u64 {sPX}, 0', f's_cbranch_scc0 {L}8d', retry(f'{L}8q', 31, 0x100), ld8, 's_waitcnt vmcnt(0)', f's_branch {L}8r')
        fb(f'{L}r:', ld8 if w == 0 else None, ldA(0), f's_waitcnt vmcnt({2 + (w == 0)})', f's_add_u32 {sRETRY}, {sRETRY}, 0x100' if g('stat') else None, core(['%Z2', '%Z3']), 's_nop 3', f's_cbranch_vccz {L}d', ldA(1), retry(f'{L}q', 31, 0x100), 's_waitcnt vmcnt(2)', f's_branch {L}c')
        return o
    if w == 0: sel += ['v_and_b32 %b8, 32, %bST', 'v_lshl_or_b32 %b8, %b8, 25, %bST']
    dA = g('dA', 8) + g('sA', 2) * w
    kchk = ['v_cmp_eq_u32 vcc, 0, %td'] + wk + [f's_cbranch_vccnz {P}_kr', f'{P}_kc:', f's_add_u32 {sKF}, {sKF}, 4'] if (w == KW and not g('nowait')) else wk
    p(heat(dA - (w == 0), upd2), ld8 if w == 0 else None, ldA(0), heat(g('qA', 6), sel), ldA(1), heat(g('wA', 3), kchk), red(f'{P}_a'))
    if w == KW:
        if not g('nowait'):
            tails(f'{P}_kr:', f's_cmp_ge_u32 {sSTEP}, {NSEG-2}', f's_cbranch_scc1 {P}_kc', f'buffer_load_dword %td, off, {WS}, {sKF} sc1', 's_add_u32 s88, s88, 1' if g('stat') else None, f's_sub_u32 {sBUD}, {sBUD}, 1', f's_cmp_eq_u32 {sBUD}, 0', 's_cbranch_scc1 L_end',
                  's_waitcnt vmcnt(0)', 'v_cmp_ne_u32 vcc, 0, %td', f's_cbranch_vccnz {P}_kc', f's_branch {P}_kr')
    zs = ['%va0', '%va1', '%qk[0:3]', '%qk[4:7]', '%qk[8:11]', '%qk[12:15]']
    nz = min(g('dB', 4), 6)
    p('s_barrier', heat(g('dB', 4), zero=zs[:nz])); zs = zs[nz:]
    rot[0] = 0
    for k in range(NT):
        p('@use %FA' if k else None, ldFA, heat(g('fa', 2), zero=zs[:g('fa', 2)]), '@use %VB[4:7]' if k else None, ldFB); zs = zs[g('fa', 2):]
        if k < NT - 1: p(heat(g('fq', 3), zero=zs[:g('fq', 3)])); zs = zs[g('fq', 3):]
    p(heat(len(zs), zero=zs), heat(g('wB', 0)), 's_waitcnt lgkmcnt(0)', '@use %Z0, %Z1, %Z2, %Z3' if two else None)
    if g('fine'): p(';END')
    p(f's_branch {P}_chk')
    if g('nocomm'): p.lines = [x for x in p.lines if not x.startswith('s_cbranch_vccnz')]
    if g('forcefb'): p.lines = [x.replace('s_cbranch_vccnz', 's_branch') if x.endswith('_sr') else x for x in p.lines]
    if g('kvfix'): p.lines = [x for x in p.lines if not x.startswith((f's_add_u32 {sKV},', f's_add_u32 {sKV8},'))]
    p.lines = [x for x in p.lines if x != ';END']
    al = Alloc(POOL[:-1] if g('trace') else POOL, PIN)
    al.decl(**SIZES)
    al.decl(fl=1, fa=1, fs=1, hd=4, selR=4, selV=1, kx1=4, l8=1, pa=1, pb=2, a2=1, ax=1, Y0=2, Y1=2, T0=4, T1=4, X=4, S0=4, S1=4, Sm=4, sm=1, sm2=1, em=1, E=4, R0=4, R1=4, R2=4, Rm=4, mx=1, Pa=4, Ls=4, O=8, z=2,
            A00=4, A01=4, A10=4, A11=4, G0=2, G1=2, G2=2, G3=2, G4=1, b8=1, c0=1, c1=1, Z0=4, Z1=4, Z2=4, Z3=4, Z8=4, Rd=4, R8=4, c2=1, **{f'C{t}': 4 for t in range(5)}, **{f'f{s}': 4 for s in range(2, 9)}, **{f'g{s}': 4 for s in range(6)})
    al.run(p.lines)
    extra = {e[0] for e in al.livein} - set(PIN)
    assert not extra, extra
    rep = []
    out = fix_hazards(hoist_waits(auto_waits(al.sub(p.lines), loop=True, eager=4)), loop=True, report=rep)
    if g('fine'):
        pts = g('fine'); o2 = []; n = 0; nb = 0; k = len(pts); names = pts
        for ln in out[:-1]:
            key = None
            if ln.startswith(('v_mfma', 'v_smfmac')): key = n; n += 1
            if ln == 's_barrier': key = f'b{nb}'; nb += 1
            if ln == f'{P}_ac:': key = 'ac'
            if ln.startswith('buffer_store') and sA3 in ln: key = 'T0'
            if key in pts: j = pts.index(key) + 1; o2.append(f's_memtime s[{64+2*j}:{65+2*j}]')
            o2.append(ln)
            if f'{key}+' in pts: j = pts.index(f'{key}+') + 1; o2.append(f's_memtime s[{64+2*j}:{65+2*j}]')
            if ln == f'{P}_head:': o2.append('s_memtime s[64:65]')
        if 'end' in pts: j = pts.index('end') + 1; o2.append(f's_memtime s[{64+2*j}:{65+2*j}]')
        o2 += ['s_waitcnt lgkmcnt(0)']
        for j in range(1, k + 1): o2 += [f's_sub_u32 s{64+2*j}, s{64+2*j}, s64', f's_add_u32 s{87+j}, s{87+j}, s{64+2*j}']
        out = o2 + out[-1:]; cfg['_stamps'] = names
    if g('trace'):
        pts = g('trace'); o2 = []; n = 0; nb = 0
        for ln in out[:-2]:
            key = None
            if ln.startswith(('v_mfma', 'v_smfmac')): key = n; n += 1
            if ln == 's_barrier': key = f'b{nb}'; nb += 1
            if ln.startswith('buffer_store') and sA3 in ln: key = 'T0'
            if ln == f'{P}_head:': key = 'head'
            if key in pts: j = pts.index(key); o2.append(f's_memrealtime s[{64+2*j}:{65+2*j}]')
            o2.append(ln)
            if f'{key}+' in pts: j = pts.index(f'{key}+'); o2.append(f's_memrealtime s[{64+2*j}:{65+2*j}]')
        o2 += ['s_waitcnt lgkmcnt(0)', f's_sub_u32 s72, {sSTEP}, 25', 's_cmp_lt_u32 s72, 16', f's_cbranch_scc0 {P}_nt', 's_lshl_b32 s72, s72, 2', 's_mov_b32 s73, m0']
        for j in range(4): o2 += [f's_add_u32 m0, s72, {j}', 's_nop 0', f'v_writelane_b32 v79, s{64+2*j}, m0']
        out = o2 + ['s_mov_b32 m0, s73', f'{P}_nt:'] + out[-1:]
    if g('verbose'): print(P, len(out), 'instrs; nops:', rep)
    return out + al.sub(tails.lines) + fix_hazards(al.sub(fb.lines), timed=False)

def code(cfg, initwait, mark):
    out = []
    for w in range(3): out += [f's_cmp_eq_u32 {sW}, {w}', f's_cbranch_scc1 T{w}_pro']
    for w in (3, 2, 1, 0):
        out += [f'T{w}_pro:'] + prologue(w, cfg, initwait(f'T{w}')) + mark + [f's_branch T{w}_head']
    for w in range(4): out += ['.p2align 6'] + body(w, cfg)
    return out + ['L_team_done:'] + epilogue(cfg)

if __name__ == '__main__':
    import sys
    cfg = dict(verbose=True)
    for w in range(4): print(len(prologue(w, cfg, [])))
    b = [body(w, cfg) for w in range(4)]
    for w in range(4):
        i = b[w].index(f'T{w}_head:'); r = estimate(b[w][i:i+340]); mf = [t for t, l in r if l.startswith(('v_mfma', 'v_smfmac'))]
        print('est', [mf[k] for k in (6, 14, 26, 37, 42, 47, 61, 64, 69, 86)])
        if len(sys.argv) > 1 and int(sys.argv[1]) == w: print('\n'.join(f'{t:5d} {l}' for t, l in r))
```

```python
import sys
from asmlib import *
from layout import *
import team, roleq, roleo
NAME = 'interleave_layers__memory_aug_recurrent_mem_tr__mha_block__prompt'

def initwait(tag, xn=False):
    x = ['s_mov_b32 s94, 40'] + poll_ge(f'{tag}_xw', DBG, 's94', NSEG, 1, 'v79') if xn else []
    return [f's_cmp_lg_u32 {sW}, 0', f's_cbranch_scc1 {tag}_iw_ok'] + x + ['s_mov_b32 s94, 36'] + poll_ge(f'{tag}_iw', DBG, 's94', 256, 1, 'v79') + ['s_barrier']

def a_kernels(cfg):
    p = Prog()
    stat = cfg.get('stat')
    for l in (1, 0):
        p('.p2align 8', f'a{l}_kernel:', f's_mov_b32 {sLAYER}, {l}')
        if l == 1: p('s_branch A_entry')
    p('A_entry:', 's_cmp_ge_u32 s2, 256', 's_cbranch_scc1 L_exit')
    p('s_load_dwordx4 s[64:67], s[0:1], 0', 's_load_dwordx8 s[68:75], s[0:1], 16', 's_load_dwordx4 s[76:79], s[0:1], 88', 's_load_dwordx2 s[80:81], s[0:1], 64')
    if stat: p('s_memrealtime s[98:99]')
    p('s_getreg_b32 s3, hwreg(HW_REG_XCC_ID, 0, 3)', 'v_lshrrev_b32 v8, 6, v0', f's_mov_b32 s95, {SPIN}', f'v_readfirstlane_b32 {sW}, v8', 's_waitcnt lgkmcnt(0)')
    if cfg.get('fakexcc'): p(cfg['fakexcc'])
    p(srd(4, 76, 256), srd(8, 78, WS_BYTES), srd(12, 68, 576*8192), srd(16, 70, 576*8192), srd(20, 72, 576*8192), srd(24, 74, 4096*1152))
    p(f's_add_u32 s82, s78, {WS_X2}', 's_addc_u32 s83, s79, 0', f's_cmp_eq_u32 {sLAYER}, 0', 's_cselect_b32 s82, s64, s82', 's_cselect_b32 s83, s65, s83', srd(28, 82, S*D*2))
    p('s_lshl_b32 s84, s3, 2', 'v_mov_b32 v2, 1', f's_cmp_lg_u32 {sW}, 0', 's_cbranch_scc1 A_c1', 's_mov_b64 exec, 1', f'buffer_atomic_add v2, off, {DBG}, s84 sc0', 's_mov_b64 exec, -1', 'A_c1:')
    p('v_mov_b64 v[4:5], 0', 'v_mov_b64 v[6:7], 0', 'v_lshlrev_b32 v3, 4, v0', 's_lshl_b32 s85, s2, 12', f's_add_u32 s86, s85, {WS_RINGA}', f's_add_u32 s87, s85, {WS_RINGB - 144*4096}',
      's_cmp_lt_u32 s2, 144', 's_cselect_b32 s86, s86, s87', f's_add_u32 s87, s85, {WS_FLAG - 152*4096}', 's_cmp_lt_u32 s2, 152', 's_cselect_b32 s86, s86, s87', 's_cmp_lt_u32 s2, 168', 's_cbranch_scc0 A_c2',
      f'buffer_store_dwordx4 v[4:7], v3, {WS}, s86 offen sc1', 'A_c2:')
    p('s_cmp_lt_u32 s2, 112', 's_cbranch_scc1 A_c6', f's_sub_u32 s85, s85, {112*4096}', 'v_add_u32 v3, s85, v3', 'v_lshrrev_b32 v8, 10, v3', 'v_mul_u32_u24 v8, 7282, v8', 'v_lshrrev_b32 v8, 16, v8', 'v_add_u32 v8, 3, v8', 'v_bfe_u32 v8, v8, 1, 1',
      'v_mov_b32 v9, v8', 'v_mov_b32 v10, v8', 'v_mov_b32 v11, v8', f's_mov_b32 s86, {WS_MEMO}', f'buffer_store_dwordx4 v[8:11], v3, {WS}, s86 offen sc1', 'A_c6:')
    p('s_waitcnt vmcnt(0)', f's_cmp_lg_u32 {sW}, 0', 's_cbranch_scc1 A_c3', 'v_readfirstlane_b32 s85, v2', 's_lshl_b32 s86, s3, 5', 's_add_u32 s86, s86, s85', 's_cmp_lt_u32 s85, 32', 's_cbranch_scc1 A_c4')
    p('v_mov_b32 v2, 1', 's_mov_b32 s84, 32', 's_mov_b64 exec, 1', f'buffer_atomic_add v2, off, {DBG}, s84 sc0', 's_mov_b64 exec, -1', 's_waitcnt vmcnt(0)', 'v_readfirstlane_b32 s85, v2')
    p('A_o1:', f'buffer_load_dwordx4 v[4:7], off, {DBG}, 0 sc1', f'buffer_load_dwordx4 v[8:11], off, {DBG}, 0 offset:16 sc1', 's_sub_u32 s95, s95, 1', 's_cmp_eq_u32 s95, 0', 's_cbranch_scc1 L_end', 's_waitcnt vmcnt(0)',
      'v_add3_u32 v12, v4, v5, v6', 'v_add3_u32 v12, v12, v7, v8', 'v_add3_u32 v12, v12, v9, v10', 'v_add_u32 v12, v12, v11', 'v_cmp_gt_u32 vcc, 0x100, v12', 's_cbranch_vccnz A_o1')
    for x in range(8):
        p(f'v_readfirstlane_b32 s84, v{4+x}', 's_min_u32 s84, s84, 32', f's_add_u32 s86, s84, {32*x}', 's_add_u32 s86, s86, s85', 's_sub_u32 s84, 32, s84', 's_cmp_lt_u32 s85, s84', 's_cbranch_scc1 A_c4', 's_sub_u32 s85, s85, s84')
    p('s_branch L_end')
    p('A_c4:', 'v_mov_b32 v2, s86', 'v_mov_b32 v1, 0', 'ds_write_b32 v1, v2', 's_waitcnt lgkmcnt(0)', 'A_c3:', 's_barrier', 'v_mov_b32 v1, 0', 'ds_read_b32 v2, v1', 's_waitcnt lgkmcnt(0)', f'v_readfirstlane_b32 {sSLOT}, v2', 's_barrier')
    p(f's_cmp_lg_u32 {sW}, 0', 's_cbranch_scc1 A_c5', 'v_mov_b32 v2, 1', 's_mov_b32 s84, 36', 's_mov_b64 exec, 1', f'buffer_atomic_add v2, off, {DBG}, s84', 's_mov_b64 exec, -1', 'A_c5:')
    roles = cfg.get('roles', 'TQOB')
    far = lambda lbl: ['s_getpc_b64 s[84:85]', f'{lbl}_j:', f's_add_u32 s84, s84, {lbl}-{lbl}_j', 's_addc_u32 s85, s85, 0', 's_setpc_b64 s[84:85]']
    p(f's_cmp_lt_u32 {sSLOT}, 32', f's_cbranch_scc1 {"R_team" if "T" in roles else "L_end"}', f's_cmp_lt_u32 {sSLOT}, 160', f's_cbranch_scc1 {"R_q" if "Q" in roles else "L_end"}')
    p(roleq.ln_phase())
    p(f's_sub_u32 {roleo.sR}, {sSLOT}, 160', f's_lshr_b32 {roleo.sG}, {roleo.sR}, 5', f's_and_b32 {roleo.sR}, {roleo.sR}, 31', f's_cmp_lt_u32 {roleo.sR}, 18', f's_cbranch_scc1 {"R_o" if "O" in roles else "L_end"}')
    lines = fix_hazards(p.lines, timed=False)
    mark = ['s_memrealtime s[100:101]', 's_memtime s[86:87]', 's_waitcnt lgkmcnt(0)'] + [f's_mov_b32 s{i}, 0' for i in range(88, 95)] if stat else []
    if 'B' in roles: lines += srd(12, 80, 576*3456) + roleo.b_role(cfg, initwait('B') + mark)
    else: lines += ['s_branch L_end']
    if 'O' in roles: lines += ['R_o:'] + roleo.o_role(cfg, initwait('O') + mark)
    if 'Q' in roles: lines += ['R_q:'] + srd(28, 66, 9216) + roleq.prologue() + initwait('Q', True) + mark + roleq.main_loop(cfg)
    if 'T' in roles:
        lines += ['R_team:', f's_mov_b32 {sH}, {sSLOT}'] + srd(28, 66, 9216) + team.code(cfg, initwait, mark)
    lines += ['L_end:', 's_waitcnt vmcnt(0)']
    if stat:
        q = Prog()
        q('s_memrealtime s[64:65]', 's_memtime s[66:67]', 's_waitcnt lgkmcnt(0)', 's_sub_u32 s66, s66, s86')
        vals = ['s98', 's100', 's64', 's66', 's60', 's95', sSLOT, '0'] + [f's{i}' for i in range(88, 95)] + ['0']
        q([f'v_mov_b32 v{32+i}, {x}' for i, x in enumerate(vals)])
        q(f's_lshl_b32 s3, {sLAYER}, 8', f's_add_u32 s3, s3, {sSLOT}', 's_lshl_b32 s3, s3, 2', f's_add_u32 s3, s3, {sW}', 's_lshl_b32 s3, s3, 6', f's_add_u32 s3, s3, {WS_STAT}', 's_mov_b64 exec, 1')
        q([f'buffer_store_dwordx4 v[{32+4*i}:{35+4*i}], off, {WS}, s3 offset:{16*i}' for i in range(4)], 's_waitcnt vmcnt(0)')
        lines += q.lines
    lines += ['L_exit:', 's_endpgm']
    return lines

def desc(name, vgpr, agpr):
    acc = (vgpr + 3) // 4 * 4
    return f""".p2align 6
.amdhsa_kernel {name}
  .amdhsa_next_free_vgpr {acc + agpr if agpr else vgpr}
  .amdhsa_next_free_sgpr 102
  .amdhsa_accum_offset {acc}
  .amdhsa_group_segment_fixed_size 0
  .amdhsa_kernarg_size 104
  .amdhsa_user_sgpr_count 2
  .amdhsa_user_sgpr_kernarg_segment_ptr 1
  .amdhsa_system_sgpr_workgroup_id_x 1
.end_amdhsa_kernel
"""

def full(cfg):
    import kb
    geo = {'a0_kernel': (256, 256, 163840, 256, 256), 'a1_kernel': (256, 256, 163840, 256, 256)}
    geo.update(kb.GEO)
    launches = cfg.get('launches', ['a0_kernel', 'battn_kernel', 'bo0_kernel', 'a1_kernel', 'battn_kernel', 'bo1_kernel'])
    head = ''.join(f'; @launch kernel={k} grid=({geo[k][0]},1,1) block=({geo[k][1]},1,1) lds={geo[k][2]}\n' for k in launches)
    body = a_kernels(cfg) + kb.kernels(cfg)
    txt = head + '.amdgcn_target "amdgcn-amd-amdhsa--gfx950"\n.text\n' + ''.join(f'.globl {k}\n.type {k},@function\n' for k in geo) + fmt(body)
    txt += '.section .rodata,"a"\n' + ''.join(desc(k, g[3], g[4]) for k, g in geo.items())
    return txt

DEFAULT = dict(dA=14, sA=2, qA=4, wA=3, dB=3, fq=4)
if __name__ == '__main__':
    txt = full(dict(DEFAULT))
    open(f'cdna_kernels/{NAME}.s', 'w').write(txt)
    print(len(txt), 'bytes')
```

```python
S, D, H, DH, M, SEG = 2048, 576, 32, 128, 8, 32
NSEG = 64
MB = 1 << 20
WS_RINGA = 1 * MB
RINGA_PAR = 0x48000
WS_RINGB = 2 * MB
RINGB_PAR = 0x4000
WS_FLAG = 3 * MB
WS_STAT = 3 * MB + 0x80000
WS_XN = 4 * MB
WS_X1 = 8 * MB
WS_X2 = 12 * MB
WS_KVM = 16 * MB
WS_KV = 32 * MB
WS_O = 64 * MB
WS_BQ = 80 * MB
WS_BYTES = 268435456
LOG2E = 1.4426950408889634
import struct
def f32bits(x): return '0x%08x' % struct.unpack('<I', struct.pack('<f', x))[0]
FL_ALIGN = WS_FLAG
FL_KV = WS_FLAG + 0x1000
FL_KM = WS_FLAG + 0x4000
FL_O = WS_FLAG + 0x6000
FL_X1 = WS_FLAG + 0x9000
FL_END = WS_FLAG + 0x10000
NQREP = 3
DBG = 's[4:7]'; WS = 's[8:11]'
sW, sH = 's32', 's33'
sLAYER, sSLOT = 's96', 's97'
SPIN = 400000
def srd(d, b, nbytes):
    return [f's_mov_b32 s{d}, s{b}', f's_mov_b32 s{d+1}, s{b+1}', f's_mov_b32 s{d+2}, {nbytes}', f's_mov_b32 s{d+3}, 0x00020000']
def poll_ge(lbl, srd_, soff, want, n=1, vt='v76', bud='s95', sleep=1):
    reg = vt if n == 1 else f'v[{vt[1:]}:{int(vt[1:])+n-1}]'
    r = int(vt[1:])
    out = [f'{lbl}:', f'buffer_load_dword{"" if n == 1 else "x%d" % n} {reg}, off, {srd_}, {soff} sc1', f's_sub_u32 {bud}, {bud}, 1', f's_cmp_eq_u32 {bud}, 0', 's_cbranch_scc1 L_end', 's_waitcnt vmcnt(0)']
    if n == 4: out += [f'v_min3_u32 v{r}, v{r}, v{r+1}, v{r+2}', f'v_min_u32 v{r}, v{r}, v{r+3}']
    out += [f'v_cmp_gt_u32 vcc, {want}, v{r}', f's_cbranch_vccz {lbl}_ok', f's_sleep {sleep}', f's_branch {lbl}', f'{lbl}_ok:']
    return out
WS_BQM = 80 * MB
WS_BKM = 82 * MB
WS_BQR = 84 * MB
WS_BKR = 84 * MB + 0x40000
WS_BV = 85 * MB
BV_H = 64 * 1216
WS_BO = 88 * MB
CB = LOG2E * 18 ** -0.5
WS_MEMO = 16 * MB
WS_SCR = 17 * MB
FL_XN = WS_FLAG + 0xC000

LSTRIDE = 96 * MB
WS_PART = 20 * MB
FL_B = WS_FLAG + 0xD000
FL_BA = WS_FLAG + 0xD800
FL_X2 = WS_FLAG + 0xE000
def stat_store(tag):
    q = ['s_waitcnt vmcnt(0)', 's_memrealtime s[84:85]', 's_memtime s[82:83]', 's_waitcnt lgkmcnt(0)', 's_sub_u32 s82, s82, s86']
    vals = ['s98', 's100', 's84', 's82', 's60', 's95', sSLOT, 's99'] + [f's{i}' for i in range(88, 95)] + ['0']
    q += [f'v_mov_b32 v{60+i}, {x}' for i, x in enumerate(vals)]
    q += [f's_lshl_b32 s82, {sSLOT}, 2', f's_add_u32 s82, s82, {sW}', 's_lshl_b32 s82, s82, 6', f's_add_u32 s82, s82, {WS_STAT}', 's_mov_b64 exec, 1']
    return q + [f'buffer_store_dwordx4 v[{60+4*i}:{63+4*i}], off, {WS}, s82 offset:{16*i}' for i in range(4)] + ['s_mov_b64 exec, -1', 's_waitcnt vmcnt(0)']
def next_layer(lbl, cfg, extra=()):
    return [f's_cmp_lg_u32 {sLAYER}, 0', 's_cbranch_scc1 L_end'] + (stat_store(lbl) if cfg.get('stat') else []) + ([] if cfg.get('layers', 2) == 2 else ['s_branch L_exit']) + \
           [f's_mov_b32 {sLAYER}, 1', f's_add_u32 s8, s8, {LSTRIDE}', 's_addc_u32 s9, s9, 0', f's_mov_b32 s10, {WS_BYTES - LSTRIDE}'] + list(extra) + [f's_branch {lbl}']
```

```python
from asmlib import *
from layout import *
SRD = {'q': 's[12:15]', 'k': 's[16:19]', 'v': 's[20:23]'}; SRD_M = 's[28:31]'
XN, PARK, MEMU, KMS = 0, 36864, 122880, 132096
sJ, sSEG, sPREV, sC, sRB, sPEND, sBUF = 's34', 's35', 's36', 's37', 's38', 's39', 's40'
sT = ['s41', 's42', 's43', 's44', 's45', 's46']
sONE = 's47'
MASK0 = 48
PIN = dict(vL=0, vMW=1, vMR=2, vK=3, vV=4, vKM=8, vKW=9, vNEG=10)
SIZES = dict(vL=1, vMW=1, vMR=1, vK=1, vV=4, vKM=1, vKW=1, vNEG=1)
def wreg(m, j):
    n = 3 * j + 'qkv'.index(m)
    return ('a', 4 * n) if n < 64 else ('v', 80 + 4 * (n - 64))
def wop(m, j):
    k, r = wreg(m, j); return f'{k}[{r}:{r+3}]'

def raw_dma(vX, seg, tmp, srd_, x8, rawb):
    out = [f's_mul_i32 {tmp}, {seg}, 36864']
    for i in range(9):
        out += [f's_add_u32 m0, {rawb}, {i*1024}', f's_add_u32 {tmp}, {tmp}, {x8}' if i else 's_nop 0', f'buffer_load_dwordx4 {vX}, {srd_}, {tmp} offen sc1 lds']
    return out

def ln_src_setup(p, ln, vX, vXN, x8, rawb, xnbase, rowmajor_if_layer0, t0, t1, sa, sb):
    if rowmajor_if_layer0:
        p(f's_mov_b32 {sa}, 1152', f's_mov_b32 {sb}, 16')
    else:
        p(f's_mov_b32 {sa}, 16', f's_mov_b32 {sb}, 512')
    p(f's_lshl_b32 {x8}, {sb}, 3', f's_mul_i32 {rawb}, {sW}, 9216')
    p(f'v_and_b32 {t0}, 7, {ln}', f'v_lshl_add_u32 {t0}, {sW}, 3, {t0}', f'v_lshrrev_b32 {t1}, 3, {ln}')
    p(f'v_mul_lo_u32 {vX}, {t0}, {sa}', f'v_lshlrev_b32 {t0}, 4, {t0}', f'v_lshl_add_u32 {t0}, {t1}, 9, {t0}', f'v_add_u32 {vXN}, {xnbase}, {t0}', f'v_mul_lo_u32 {t1}, {t1}, {sb}', f'v_add_u32 {vX}, {vX}, {t1}')

def ln_code(p, rawb, one, after_reads=(), store=None):
    p(f'v_add_u32 %ra, {rawb}, %vL')
    for i in range(9): p(f'ds_read_b128 %x[{4*i}:{4*i+3}], %ra offset:{i*1024}')
    p('v_mov_b32 %su, 0', 'v_mov_b32 %sq, 0')
    for i in range(36):
        p(f'v_dot2_f32_bf16 %su, %x[{i}], {one}, %su', f'v_dot2_f32_bf16 %sq, %x[{i}], %x[{i}], %sq')
        if i == 33: p(after_reads)
    p('s_nop 2')
    for r in ('su', 'sq'): p(f'v_add_f32_dpp %{r}, %{r}, %{r} row_ror:8 row_mask:0xf bank_mask:0xf')
    for sw in ('16', '32'):
        p('v_mov_b32 %t0, %su', 'v_mov_b32 %t1, %sq', f'v_permlane{sw}_swap_b32 %su, %t0', f'v_permlane{sw}_swap_b32 %sq, %t1', 'v_add_f32 %su, %su, %t0', 'v_add_f32 %sq, %sq, %t1')
    p(f'v_mul_f32 %su, {f32bits(1/576)}, %su', f'v_mul_f32 %sq, {f32bits(1/576)}, %sq', 'v_fma_f32 %sq, -%su, %su, %sq', 'v_max_f32 %sq, 0, %sq', f'v_add_f32 %sq, {f32bits(1e-5)}, %sq')
    p('v_rsq_f32 %rb[0], %sq', 'v_mul_f32 %rb[1], %su, %rb[0]')
    for i in range(36):
        y = f'y{i % 2}'
        p(f'v_lshlrev_b32 %{y}[0], 16, %x[{i}]', f'v_and_b32 %{y}[1], 0xffff0000, %x[{i}]', f'v_pk_fma_f32 %{y}, %{y}, %rb, %rb op_sel:[0,0,1] op_sel_hi:[1,0,1] neg_lo:[0,0,1] neg_hi:[0,0,1]',
          f'v_cvt_pk_bf16_f32 %x[{i}], %{y}[0], %{y}[1]')
        if i % 4 == 3: p(store(i // 4, f'%x[{i-3}:{i}]') if store else f'ds_write_b128 %vXN, %x[{i-3}:{i}] offset:{(i//4)*4096}')
LN_DECL = dict(x=36, ra=1, su=1, sq=1, t0=1, t1=1, rb=2, y0=2, y1=2)

def finish(p, pin, sizes, decl, pool):
    al = Alloc(pool, pin); al.decl(**sizes); al.decl(**decl)
    al.run(p.lines, loop=False)
    extra = {e[0] for e in al.livein} - set(pin)
    assert not extra, extra
    return fix_hazards(auto_waits(al.sub(p.lines)))

def prologue(cfg={}):
    p = Prog()
    P = {k: f'v{v}' for k, v in PIN.items()}
    ln, t0, t1, t2, aD, aT, aTV = 'v60', 'v61', 'v62', 'v63', 'v64', 'v65', 'v66'
    p(f'v_and_b32 {ln}, 63, v0')
    p(f's_lshl_b32 {sT[0]}, {sH}, 8', f's_lshl_b32 {sT[1]}, {sW}, 6', f's_add_u32 {sT[0]}, {sT[0]}, {sT[1]}')
    p(f'v_lshrrev_b32 {t0}, 2, {ln}', f'v_lshlrev_b32 {t0}, 13, {t0}', f'v_and_b32 {t1}, 3, {ln}', f'v_lshlrev_b32 {t2}, 4, {t1}', f'v_add3_u32 {aD}, {t0}, {t2}, {sT[0]}')
    NS = cfg.get('qns', 8)
    p(f's_mul_i32 {sT[2]}, {sW}, {NS*4096}')
    units = [(m, u) for u in range(9) for m in 'kvq']
    def dma(n):
        m, u = units[n]; out = []
        for i in range(4):
            out += [f's_add_u32 m0, {sT[2]}, {(n % NS)*4096 + i*1024}', f's_mov_b32 {sT[3]}, {(64*u + 16*i)*8192}', f'buffer_load_dwordx4 {aD}, {SRD[m]}, {sT[3]} offen {cfg.get("qmod", "")} lds']
        return out
    for n in range(NS - 1): p(dma(n))
    p(f'v_bfe_u32 {t0}, {ln}, 2, 2', f'v_lshrrev_b32 {t2}, 5, {ln}', f'v_lshl_add_u32 {t0}, {t2}, 3, {t0}', f'v_lshlrev_b32 {t0}, 6, {t0}', f'v_add_u32 {t0}, {sT[2]}, {t0}')
    p(f'v_bfe_u32 {t2}, {ln}, 4, 1', f'v_lshl_add_u32 {aTV}, {t2}, 5, {t0}', f'v_lshl_add_u32 {aTV}, {t1}, 3, {aTV}')
    p(f'v_lshl_add_u32 {aT}, {t2}, 4, {t0}', f'v_and_b32 {t2}, 2, {ln}', f'v_lshl_add_u32 {aT}, {t2}, 4, {aT}', f'v_and_b32 {t2}, 1, {ln}', f'v_lshl_add_u32 {aT}, {t2}, 3, {aT}')
    b = lambda i, d: f'v_bfe_u32 {d}, {ln}, {i}, 1'
    vK = P['vK']
    p(b(1, t0), f'v_lshlrev_b32 {vK}, 10, {t0}', b(4, t0), f'v_lshl_add_u32 {vK}, {t0}, 6, {vK}', b(3, t0), f'v_lshl_add_u32 {vK}, {t0}, 7, {vK}', b(2, t0), f'v_lshl_add_u32 {vK}, {t0}, 5, {vK}',
      b(0, t0), f'v_lshl_add_u32 {vK}, {t0}, 4, {vK}', b(5, t0), f'v_lshl_add_u32 {vK}, {t0}, 8, {vK}')
    p(f'v_and_b32 {t1}, 15, {ln}', f'v_lshl_add_u32 {t1}, {t0}, 4, {t1}', f'v_and_b32 {t2}, 16, {ln}', f'v_cmp_eq_u32 vcc, 0, {t2}')
    p(f'v_lshlrev_b32 {t0}, 4, {t1}', f'v_add_u32 v67, 3072, {t0}', f'v_add_u32 v68, 2056, {t0}', f'v_cndmask_b32 v{PIN["vV"]}, v68, v67, vcc')
    p(f'v_add_u32 v67, 2048, {t0}', f'v_add_u32 v68, 3080, {t0}', f'v_cndmask_b32 v{PIN["vV"]+1}, v68, v67, vcc')
    vKM, vKW, vMW, vMR = P['vKM'], P['vKW'], P['vMW'], P['vMR']
    acc2 = lambda d, terms, base: [f'v_mov_b32 {d}, {base}'] + sum([[f'v_bfe_u32 {t0}, {ln}, {i}, {c}', f'v_lshl_add_u32 {d}, {t0}, {sh}, {d}'] for i, c, sh in terms], [])
    p(f's_lshl_b32 {sT[0]}, {sW}, 10', f's_add_u32 {sT[0]}, {sT[0]}, {MEMU}', acc2(vMW, [(4, 2, 8), (1, 1, 7), (2, 2, 5), (0, 1, 4)], sT[0]))
    p(f's_lshl_b32 {sT[0]}, {sW}, 9', f's_add_u32 {sT[0]}, {sT[0]}, {KMS}', acc2(vKW, [(2, 1, 8), (4, 1, 7), (3, 1, 6), (0, 2, 4), (5, 1, 3)], sT[0]))
    p(acc2(vMR, [(5, 1, 7), (3, 1, 6), (0, 2, 4)], MEMU), b(2, t0), b(4, t1), f'v_xor_b32 {t0}, {t0}, {t1}', f'v_lshl_add_u32 {vMR}, {t0}, 31, {vMR}')
    p(acc2(vKM, [(0, 3, 4), (5, 1, 7)], KMS))
    p(f'v_and_b32 {t1}, 31, {ln}', f'v_lshlrev_b32 {t0}, 2, {t0}', f'v_sub_u32 {t1}, {t1}, {t0}')
    for i in range(16): p(f'v_cmp_le_i32 s[{MASK0+2*i}:{MASK0+2*i+1}], {8*(i//4)+i%4}, {t1}')
    p(f'v_mov_b32 {P["vNEG"]}, {f32bits(-1e9*LOG2E)}', f'v_lshlrev_b32 {P["vL"]}, 4, {ln}', f's_mov_b32 {sC}, {f32bits(LOG2E*DH**-0.5)}')
    for n, (m, u) in enumerate(units):
        p(f's_waitcnt vmcnt({4*(min(26, n + NS - 2) - n)})')
        for jj in range(4):
            k, r = wreg(m, 4 * u + jj)
            for i in range(2): p(f'ds_read_b64_tr_b16 {k}[{r+2*i}:{r+2*i+1}], {aTV if m == "v" else aT} offset:{(n%NS)*4096 + (16*jj+4*i)*64}')
        if n + NS - 1 < 27: p('s_waitcnt lgkmcnt(8)' if n else None, dma(n + NS - 1))
    p('s_waitcnt lgkmcnt(0)')
    return fix_hazards(p.lines, timed=False)

def xn_dma(seg):
    out = [f's_mul_i32 {sT[0]}, {seg}, 36864', f's_mul_i32 {sT[2]}, {sW}, 9216', f's_add_u32 {sT[0]}, {sT[0]}, {sT[2]}', f's_add_u32 {sT[0]}, {sT[0]}, {WS_XN}']
    for i in range(9):
        if i % 4 == 0: out += [f's_add_u32 m0, {sT[2]}, {XN + i*1024}', f's_add_u32 {sT[3]}, {sT[0]}, {i*1024}']
        out.append(f'buffer_load_dwordx4 v{PIN["vL"]}, {WS}, {sT[3]} offen offset:{(i%4)*1024} sc1 lds')
    return out

def signal_o(lbl):
    return ['s_barrier', f's_cmp_lg_u32 {sW}, 0', f's_cbranch_scc1 {lbl}', f's_cmp_eq_u32 {sPEND}, 0', f's_cbranch_scc1 {lbl}', 'v_mov_b32 v11, 1', 's_mov_b64 exec, 1', f'buffer_atomic_add v11, off, {WS}, {sPEND}', 's_mov_b64 exec, -1', f'{lbl}:']

def gemm_part(cfg):
    p = Prog()
    NW = 3
    rd = lambda j: f'ds_read_b128 %f{j % NW}, %vL offset:{XN + (j % 36)*1024}'
    p([rd(j) for j in range(NW - 1)])
    p(f's_lshl_b32 {sT[0]}, {sSEG}, 5', f's_add_u32 {sT[0]}, {sT[0]}, {sH}', f's_lshl_b32 {sT[0]}, {sT[0]}, 2', f's_add_u32 {sT[0]}, {sT[0]}, {sW}', f's_lshl_b32 {sT[0]}, {sT[0]}, 12', f's_add_u32 {sT[0]}, {sT[0]}, {WS_KV}')
    p(f's_mul_i32 {sT[1]}, {sW}, 6144', f's_add_u32 {sT[1]}, {sT[1]}, {sBUF}', f'v_add_u32 %pa, {sT[1]}, %vL')
    p(f's_lshl_b32 {sT[2]}, {sH}, 6', f's_add_u32 {sT[2]}, {sT[2]}, {sSEG}', f's_lshl_b32 {sT[2]}, {sT[2]}, 2', f's_add_u32 {sT[2]}, {sT[2]}, {FL_KV}')
    p(f's_add_u32 {sT[1]}, {sSEG}, {NQREP}', f's_min_u32 {sT[1]}, {sT[1]}, {NSEG-1}', f's_lshl_b32 {sT[4]}, {sT[1]}, 2', f's_add_u32 {sT[4]}, {sT[4]}, {FL_XN}')
    for j in range(36):
        c = lambda a: '0' if j == 0 else a
        p(f'v_mfma_f32_32x32x16_bf16 %ak, {wop("k", j)}, %f{j%NW}, {c("%ak")}', rd(j + NW - 1), f'v_mfma_f32_32x32x16_bf16 %av, %f{j%NW}, {wop("v", j)}, {c("%av")}')
        if j == 16: p('s_waitcnt vmcnt(0)', signal_o('Q_so'), f's_mov_b32 {sPEND}, 0')
    ep = []
    for a, off in (('k', 2048), ('v', 4096)):
        for c in range(2):
            if a == 'k': ep += [[f'v_mul_f32 %ak[{i}], {sC}, %ak[{i}]' for i in range(8*c + 4*x, 8*c + 4*x + 4)] for x in range(2)]
            ep.append([f'v_cvt_pk_bf16_f32 %b{a}{c}[{u}], %a{a}[{8*c+2*u}], %a{a}[{8*c+2*u+1}]' for u in range(4)])
            if a == 'k': ep.append([f'buffer_store_dwordx4 %bk{c}, %vK, {WS}, {sT[0]} offen offset:{512*c} sc1'])
            if a == 'v': ep += [[f'buffer_store_dwordx2 %bv{c}[{2*u2}:{2*u2+1}], %vV[{u2}], {WS}, {sT[0]} offen offset:{512*c} sc1'] for u2 in range(2)]
            ep.append([f'ds_write_b128 %pa, %b{a}{c} offset:{off + 1024*c}'])
    ep.append([f'buffer_load_dword %xf, off, {WS}, {sT[4]} sc1'])
    for j in range(36, 72):
        p(f'v_mfma_f32_32x32x16_bf16 %aq, {wop("q", j - 36)}, %f{j%NW}, {"%aq" if j > 36 else 0}', rd(j + NW - 1) if j + NW - 1 < 72 else None, ep.pop(0) if ep and j > 36 else None)
    p('s_waitcnt vmcnt(0)', 's_barrier', f's_cmp_lg_u32 {sW}, 1', 's_cbranch_scc1 Q_sk', 'v_mov_b32 v11, 1', 's_mov_b64 exec, 1', f'buffer_store_dword v11, off, {WS}, {sT[2]} sc1', 's_mov_b64 exec, -1', 'Q_sk:')
    for c in range(2):
        p([f'v_cvt_pk_bf16_f32 %bq{c}[{u}], %aq[{8*c+2*u}], %aq[{8*c+2*u+1}]' for u in range(4)], f'ds_write_b128 %pa, %bq{c} offset:{1024*c}')
    if not cfg.get('nowait'): p('v_cmp_ne_u32 vcc, 0, %xf', 's_cbranch_vccnz Q_xf_ok', poll_ge('Q_xf', WS, sT[4], 1, 1, 'v11'))
    p(xn_dma(sT[1]), 's_waitcnt lgkmcnt(0)')
    return finish(p, PIN, SIZES, dict(xf=1, pa=1, ak=16, av=16, aq=16, **{f'f{i}': 4 for i in range(NW)}, **{f'b{a}{c}': 4 for a in 'qkv' for c in range(2)}), list(range(12, 80)))

def attn_part(cfg):
    p = Prog()
    p(f's_lshl_b32 {sT[2]}, {sPREV}, 5', f's_add_u32 {sT[2]}, {sT[2]}, {sH}', f's_lshl_b32 {sT[2]}, {sT[2]}, 2', f's_add_u32 {sT[2]}, {sT[2]}, {sW}', f's_lshl_b32 {sT[2]}, {sT[2]}, 11', f's_add_u32 {sT[2]}, {sT[2]}, {WS_O}')
    p(f's_mul_i32 {sT[0]}, {sPREV}, 9216', f's_add_u32 {sT[3]}, {sT[0]}, {WS_MEMO + 8192}', f's_lshl_b32 {sT[4]}, {sW}, 10', f's_add_u32 {sT[0]}, {sT[0]}, {sT[4]}', f's_add_u32 {sT[0]}, {sT[0]}, {WS_MEMO}', f's_add_u32 {sT[1]}, {sT[0]}, 4096')
    p(f'buffer_load_dword %c0, off, {WS}, {sT[1]} sc1', f'v_add_u32 %pa, {sRB}, %vL')
    fr = [(w, c) for w in range(4) for c in range(2)]
    rq = lambda n: f'ds_read_b128 %q{n%3}, %pa offset:{fr[n][0]*6144 + fr[n][1]*1024}'
    rk = lambda n: f'ds_read_b128 %k{n%3}, %pa offset:{fr[n][0]*6144 + 2048 + fr[n][1]*1024}'
    rm = lambda n: f'ds_read_b128 %k{n%3}, %vKM offset:{fr[n][0]*512 + fr[n][1]*256}'
    p(rq(0), rk(0), rq(1), rk(1))
    for n in range(8):
        if n < 6: p(rq(n + 2), rk(n + 2))
        p(f'v_mfma_f32_32x32x16_bf16 %sx, %k{n%3}, %q{n%3}, {"%sx" if n else 0}')
    for i in range(16): p(f'v_cndmask_b32 %sx[{i}], %vNEG, %sx[{i}], s[{MASK0+2*i}:{MASK0+2*i+1}]')
    p('v_max3_f32 %mx, %sx[0], %sx[1], %sx[2]', [f'v_max3_f32 %mx, %mx, %sx[{i}], %sx[{i+1}]' for i in range(3, 15, 2)], 'v_max_f32 %mx, %mx, %sx[15]')
    p(f's_add_u32 {sONE}, {sPREV}, 1', f's_bfe_u32 {sONE}, {sONE}, 0x10001', f'v_subrev_u32 %m8, {sT[4]}, %vMW', '@def %m0, %m1, %m2, %c1', 's_waitcnt vmcnt(0)', f's_cmp_eq_u32 {sPREV}, 0', 's_cbranch_scc1 Q_m0')
    bud = ['s_sub_u32 s95, s95, 1', 's_cmp_eq_u32 s95, 0', 's_cbranch_scc1 L_end']
    if not cfg.get('nowait'):
        p('Q_mp:', f'v_xor_b32 %c0, {sONE}, %c0', 'v_and_b32 %c0, 1, %c0', 'v_cmp_ne_u32 vcc, 0, %c0', 's_cbranch_vccz Q_ml', 's_sleep 1', f'buffer_load_dword %c0, off, {WS}, {sT[1]} sc1', bud, 's_waitcnt vmcnt(0)', 's_branch Q_mp')
    p('Q_ml:', [f'buffer_load_dwordx4 %m{i}, %vL, {WS}, {sT[(0, 1, 3)[i]]} offen sc1' for i in range(3)], bud, 's_waitcnt vmcnt(0)')
    p(f'v_bitop3_b32 %c0, %m0[0], %m0[2], {sONE} bitop3:0x7e', f'v_bitop3_b32 %c1, %m1[0], %m1[2], {sONE} bitop3:0x7e', 'v_or_b32 %c0, %c0, %c1', f'v_bitop3_b32 %c1, %m2[0], %m2[2], {sONE} bitop3:0x7e',
      'v_bitop3_b32 %c0, %c0, %c1, 1 bitop3:0xa8', 'v_cmp_ne_u32 vcc, 0, %c0', 's_cbranch_vccnz Q_ml' if not cfg.get('nowait') else None, '@use %m0, %m1, %m2', 's_branch Q_mw')
    p('Q_m0:', 'v_bfe_u32 %c0, %vMW, 4, 3', 'v_mul_u32_u24 %c0, 1152, %c0', 'v_bfe_u32 %c1, %vMW, 7, 3', 'v_lshl_add_u32 %c0, %c1, 4, %c0', f's_lshl_b32 {sT[4]}, {sW}, 7')
    p(f'buffer_load_dwordx4 %m0, %c0, {SRD_M}, {sT[4]} offen', f'buffer_load_dwordx4 %m1, %c0, {SRD_M}, {sT[4]} offen offset:512', f'buffer_load_dwordx4 %m2, %c0, {SRD_M}, 0 offen offset:1024', 's_waitcnt vmcnt(0)')
    p('Q_mw:', 'ds_write_b128 %vMW, %m0', 'ds_write_b128 %vMW, %m1 offset:4096', 'ds_write_b128 %m8, %m2 offset:8192', '@ldsdone', 's_barrier')
    NM = 6
    rM = lambda j: f'ds_read_b128 %u{j%NM}, %vMR offset:{j*256}'
    p([rM(j) for j in range(NM - 1)])
    for j in range(36):
        p(f'v_mfma_f32_16x16x32_bf16 %km, {wop("k", j)}, %u{j%NM}, {"%km" if j else 0}', rM(j + NM - 1) if j + NM - 1 < 36 else None, f'v_mfma_f32_16x16x32_bf16 %vf, %u{j%NM}, {wop("v", j)}, {"%vf" if j else 0}')
    p(rq(0), rq(1), [f'v_mul_f32 %km[{i}], {sC}, %km[{i}]' for i in range(4)], 'v_cvt_pk_bf16_f32 %km[0], %km[0], %km[1]', 'v_cvt_pk_bf16_f32 %km[1], %km[2], %km[3]', 'ds_write_b64 %vKW, %km[0:1]')
    p('v_cvt_pk_bf16_f32 %vm[0], %vf[0], %vf[1]', 'v_cvt_pk_bf16_f32 %vm[1], %vf[2], %vf[3]', '@ldsdone', 's_barrier', rm(0), rm(1))
    for n in range(8):
        if n < 6: p(rq(n + 2), rm(n + 2))
        p(f'v_mfma_f32_32x32x16_bf16 %sm, %k{n%3}, %q{n%3}, {"%sm" if n else 0}')
    p(f's_mul_i32 {sT[4]}, {sW}, 6144', f'v_add_u32 %pa, {sT[4]}, %pa', 'ds_read_b128 %v0, %pa offset:4096', 'ds_read_b128 %v1, %pa offset:5120')
    p('v_max3_f32 %mx, %mx, %sm[0], %sm[1]', 'v_max3_f32 %mx, %mx, %sm[2], %sm[3]', 'v_mov_b32 %my, %mx', 'v_permlane32_swap_b32 %mx, %my', 'v_max_f32 %mx, %mx, %my')
    els = [f'%sm[{i}]' for i in range(4)] + [f'%sx[{i}]' for i in range(16)]
    for e in els: p(f'v_sub_f32 {e}, {e}, %mx')
    for e in els: p(f'v_exp_f32 {e}, {e}')
    p('v_cvt_pk_bf16_f32 %pm[0], %sm[0], %sm[1]', 'v_cvt_pk_bf16_f32 %pm[1], %sm[2], %sm[3]')
    for u in range(8): p(f'v_cvt_pk_bf16_f32 %px[{u}], %sx[{2*u}], %sx[{2*u+1}]')
    p('v_mfma_f32_32x32x8_bf16 %o, %vm, %pm, 0', 'v_add_f32 %l, %sm[0], %sm[1]', [f'v_add_f32 %l, %l, {e}' for e in els[2:8]], 'v_mfma_f32_32x32x16_bf16 %o, %v0, %px[0:3], %o',
      [f'v_add_f32 %l, %l, {e}' for e in els[8:14]], 'v_mfma_f32_32x32x16_bf16 %o, %v1, %px[4:7], %o', [f'v_add_f32 %l, %l, {e}' for e in els[14:]])
    p('v_mov_b32 %my, %l', 'v_permlane32_swap_b32 %l, %my', 'v_add_f32 %l, %l, %my', 'v_rcp_f32 %l, %l')
    for c in range(2):
        for i in range(8): p(f'v_mul_f32 %o[{8*c+i}], %o[{8*c+i}], %l')
        for u in range(4): p(f'v_cvt_pk_bf16_f32 %ob{c}[{u}], %o[{8*c+2*u}], %o[{8*c+2*u+1}]')
        p(f'buffer_store_dwordx4 %ob{c}, %vL, {WS}, {sT[2]} offen offset:{1024*c} sc1')
    p(f's_lshl_b32 {sPEND}, {sPREV}, 7', f's_add_u32 {sPEND}, {sPEND}, {FL_O}')
    return finish(p, PIN, SIZES, dict(pa=1, sx=16, sm=16, mx=1, my=1, l=1, k0=4, k1=4, k2=4, v0=4, v1=4, vm=2, pm=2, px=8, o=16, ob0=4, ob1=4, m0=4, m1=4, m2=4, m8=1, c0=1, c1=1, km=4, vf=4,
                                      **{f'q{i}': 4 for i in range(3)}, **{f'u{i}': 4 for i in range(NM)}), list(range(12, 80)))

def main_loop(cfg):
    p = Prog()
    R = NQREP
    p('Q_layer:', f's_mov_b32 {sSEG}, {sJ}', f's_mov_b32 {sBUF}, {PARK}', f's_mov_b32 {sRB}, {PARK + 24576}', f's_mov_b32 {sPEND}, 0', f's_lshl_b32 {sT[4]}, {sSEG}, 2', f's_add_u32 {sT[4]}, {sT[4]}, {FL_XN}')
    p(poll_ge('Q_x0', WS, sT[4], 1, 1, 'v11') if not cfg.get('nowait') else None, fix_hazards(xn_dma(sSEG), timed=False), 's_waitcnt vmcnt(0)', 's_barrier')
    p('Q_loop:', f's_cmp_ge_u32 {sSEG}, {NSEG}', 's_cbranch_scc1 Q_attn', gemm_part(cfg), f's_cmp_lt_u32 {sSEG}, {2*R}', 's_cbranch_scc0 Q_attn', 's_waitcnt vmcnt(0)', 's_barrier', 's_branch Q_next')
    p('Q_attn:', f's_sub_u32 {sPREV}, {sSEG}, {2*R}', attn_part(cfg), f's_cmp_ge_u32 {sSEG}, {NSEG - R}', 's_cbranch_scc0 Q_next', 's_waitcnt vmcnt(0)', signal_o('Q_so3'))
    p('Q_next:', f's_add_u32 {sSEG}, {sSEG}, {R}', f's_mov_b32 {sBUF}, {sRB}', f's_add_u32 {sRB}, {sRB}, 24576', f's_cmp_eq_u32 {sRB}, {PARK + 3*24576}', f's_cselect_b32 {sRB}, {PARK}, {sRB}',
      f's_cmp_lt_u32 {sSEG}, {NSEG + 2*R}', 's_cbranch_scc1 Q_loop', next_layer('Q_layer', cfg))
    return p.lines

def ln_body(tag, seg, rowmajor, dst, before_signal):
    p = Prog()
    T = ['s41', 's42', 's43', 's44', 's45', 's46']
    p('v_and_b32 v60, 63, v0', 'v_lshlrev_b32 %vL, 4, v60')
    ln_src_setup(p, 'v60', '%vX', '%vXN', T[2], T[3], 0, rowmajor, 'v61', 'v62', T[0], T[1])
    p(raw_dma('%vX', seg, T[0], 's[28:31]', T[2], T[3]), f's_mul_i32 {T[4]}, {seg}, 36864', f's_add_u32 {T[4]}, {T[4]}, {dst + WS_XN}', f's_mov_b32 {T[5]}, 0x3f803f80', 's_waitcnt vmcnt(0)')
    ln_code(p, T[3], T[5], store=lambda i, r: [f's_add_u32 {T[0]}, {T[4]}, {i*4096}', f'buffer_store_dwordx4 {r}, %vXN, {WS}, {T[0]} offen sc1'])
    p('s_waitcnt vmcnt(0)', before_signal, f's_cmp_lg_u32 {sW}, 0', f's_cbranch_scc1 {tag}_done', 'v_mov_b32 v4, 1', f's_lshl_b32 {T[0]}, {seg}, 2', f's_add_u32 {T[0]}, {T[0]}, {dst + FL_XN}',
      's_mov_b64 exec, 1', f'buffer_store_dword v4, off, {WS}, {T[0]} sc1', 's_mov_b64 exec, -1', f'{tag}_done:')
    return finish(p, dict(vL=1, vX=2, vXN=3), dict(vL=1, vX=1, vXN=1), LN_DECL, list(range(6, 60)))

if __name__ == '__main__':
    print(len(prologue()), len(gemm_part({})), len(attn_part({})), len(main_loop({})))
```

```python
from asmlib import *
from layout import *
import roleq
LK, LR, LV = 0, 65536, 73728
tup = lambda r, n: f'v[{r}:{r+n-1}]'
PRE = [(0, 0, 3, 1), (1, 0, 3, 1), (2, 0, 3, 1), (3, 0, 4, 1), (4, 0, 4, 1), (0, 3, 2, 0), (1, 3, 2, 0), (2, 3, 3, 0), (3, 4, 2, 0), (0, 5, 2, 0), (1, 5, 2, 0), (2, 6, 1, 0), (3, 6, 1, 0)]
DONE = [7, 7, 7, 7, 4, 0, 0, 0]
TASKS = [t + (0,) for t in PRE] + [(q, DONE[q], 8 - DONE[q], int(DONE[q] == 0), 1) for q in range(8)]
for _q in range(8): assert sum(t[2] for t in PRE if t[0] == _q) == DONE[_q]
enc = lambda t: t[0] | t[1] << 4 | t[2] << 8 | t[3] << 12 | t[4] << 13 | (max(t[0], t[1] + t[2] - 1) + 1) << 16

def ba_role(cfg, initwait):
    sC_, sQ, sI, sNK, sCUR, sNXT = 's34', 's35', 's36', 's37', 's38', 's39'
    vTAB = 'v180'
    T = [f's{i}' for i in range(40, 52)]
    ln, vL, vR, vV, idx, vQ, aK, aR, aV = 'v0', 'v1', 'v2', 'v3', 'v4', 'v5', 'v8', 'v9', 'v10'
    QM = [12, 24]; QR = [16, 28]; O = [36, 52]; SB = [68, 84]; KB = [100, 104]; RB = [108, 110]; VB = [112, 116, 120, 124]
    NQ = [128, 132]; NR = [136, 137]; NO = [140, 152]; NM = 164
    p = Prog()
    p('v_and_b32 v0, 63, v0', f'v_lshlrev_b32 {vL}, 4, {ln}', f'v_lshlrev_b32 {vR}, 2, {ln}', f'v_add_u32 {vR}, {LR}, {vR}', f'v_and_b32 v6, 31, {ln}', f'v_lshlrev_b32 {vQ}, 2, v6', f'v_lshrrev_b32 v7, 5, {ln}', 'v_mul_u32_u24 v7, 304, v7',
      'v_lshl_add_u32 v7, v6, 4, v7', 'v_cmp_lt_u32 vcc, 18, v6', 'v_mov_b32 v6, 0x40000000', 'v_cndmask_b32 v7, v7, v6, vcc', f'v_add_u32 {vV}, {LV}, v7', f'v_mov_b32 {idx}, 0xdddd')
    p([f'v_mov_b32 v{QR[b]+i}, 0' for b in range(2) for i in (1, 3, 4, 6)], 's_mov_b32 s52, -1', 's_mov_b32 s53, 0', f'v_mov_b32 {vTAB}, 0x90000')
    for i, t in enumerate(TASKS): p(f's_mov_b32 {T[0]}, {enc(t)}', f'v_writelane_b32 {vTAB}, {T[0]}, {i}')
    p(initwait, 'BR_layer:', f's_mov_b32 {sC_}, 0', f's_mov_b32 {sI}, 0', f'v_readlane_b32 {sNXT}, {vTAB}, 0')
    def prefetch(q):
        o = [f's_lshl_b32 {T[0]}, {sH}, 6', f's_lshl_b32 {T[1]}, {q}, 3', f's_add_u32 {T[0]}, {T[0]}, {T[1]}', f's_add_u32 {T[0]}, {T[0]}, {sW}', f's_lshl_b32 {T[1]}, {T[0]}, 10', f's_add_u32 {T[1]}, {T[1]}, {WS_BQM}',
             f's_lshl_b32 {T[2]}, {T[0]}, 7', f's_add_u32 {T[2]}, {T[2]}, {WS_BQR}', f's_mul_i32 {T[0]}, {T[0]}, 3072', f's_add_u32 {T[0]}, {T[0]}, {WS_PART}']
        for b in range(2):
            o += [f'buffer_load_dwordx4 {tup(NQ[b], 4)}, {vL}, {WS}, {T[1]} offen sc1', f'buffer_load_dword v{NR[b]}, {vQ}, {WS}, {T[2]} offen offset:{512*b} sc1']
            o += [f'buffer_load_dwordx4 {tup(NO[b] + 4*i, 4)}, {vL}, {WS}, {T[0]} offen offset:{1024*i} sc1' for i in range(3)]
            if b == 0: o += [f's_add_u32 {T[1]}, {T[1]}, 4096', f's_add_u32 {T[0]}, {T[0]}, {4*3072}']
        return o
    p('BR_phase:', f's_lshl_b32 {T[0]}, {sC_}, 7', f's_add_u32 {T[0]}, {T[0]}, {FL_B}', f's_cmp_lg_u32 {sW}, 0', 's_cbranch_scc1 BR_fl_ok', poll_ge('BR_fl', WS, T[0], 112, 1, 'v6'), 's_barrier')
    p(f's_lshl_b32 {T[3]}, {sW}, 10', f's_lshl_b32 {T[0]}, {sC_}, 13', f's_add_u32 {T[0]}, {T[0]}, {T[3]}', f's_lshl_b32 {T[1]}, {sH}, 16', f's_add_u32 {T[1]}, {T[1]}, {T[0]}', f's_add_u32 {T[1]}, {T[1]}, {WS_BKM}')
    dma = lambda lb, lo, gb, go: [f's_add_u32 m0, {lb}, {lo}', f's_add_u32 {T[7]}, {gb}, {go}', f'buffer_load_dwordx4 {vL}, {WS}, {T[7]} offen sc1 lds']
    p(dma(T[0], LK, T[1], 0), dma(T[0], LK + 4096, T[1], 4096))
    p(f's_mul_i32 {T[0]}, {sC_}, 9728', f's_add_u32 {T[0]}, {T[0]}, {T[3]}', f's_mul_i32 {T[1]}, {sH}, {BV_H}', f's_add_u32 {T[1]}, {T[1]}, {T[0]}', f's_add_u32 {T[1]}, {T[1]}, {WS_BV}', dma(T[0], LV, T[1], 0), dma(T[0], LV + 4096, T[1], 4096))
    p(f's_cmp_ge_u32 {sW}, 2', 's_cbranch_scc1 BR_d2', f's_cmp_eq_u32 {sW}, 0', 's_cselect_b64 exec, -1, s[52:53]', dma(T[0], LV + 8192, T[1], 8192), 's_mov_b64 exec, -1', 's_branch BR_d3')
    p('BR_d2:', f's_lshl_b32 {T[0]}, {sC_}, 10', f's_lshl_b32 {T[1]}, {sH}, 13', f's_add_u32 {T[1]}, {T[1]}, {T[0]}', dma(T[0], LR, T[1], WS_BKR), 'BR_d3:')
    p(f's_add_u32 {sC_}, {sC_}, 1', f's_lshr_b32 {T[0]}, {sNXT}, 16', f's_cmp_lt_u32 {sC_}, {T[0]}', 's_cbranch_scc1 BR_phase', f's_and_b32 {T[8]}, {sNXT}, 7', prefetch(T[8]), 's_waitcnt vmcnt(0)', 's_barrier')
    p('BR_task:', f's_mov_b32 {sCUR}, {sNXT}', f's_add_u32 {sI}, {sI}, 1', f's_and_b32 {sQ}, {sCUR}, 7', f'v_readlane_b32 {sNXT}, {vTAB}, {sI}', f's_bfe_u32 {sNK}, {sCUR}, 0x40008', f's_bfe_u32 {T[0]}, {sCUR}, 0x40004',
      f's_bitcmp1_b32 {sCUR}, 12', 's_cselect_b64 s[54:55], 0, -1')
    p(f's_lshl_b32 {T[1]}, {T[0]}, 13', f'v_add_u32 {aK}, {T[1]}, {vL}', f's_lshl_b32 {T[1]}, {T[0]}, 10', f'v_add_u32 {aR}, {T[1]}, {vR}', f's_mul_i32 {T[1]}, {T[0]}, 9728', f'v_add_u32 {aV}, {T[1]}, {vV}')
    rK = lambda t, a=aK: f'ds_read_b128 {tup(KB[t%2], 4)}, {a} offset:{t*1024}'
    rR = lambda t, a=aR: f'ds_read2st64_b32 {tup(RB[(t//4)%2], 2)}, {a} offset0:{t//2} offset1:{t//2+1}'
    rV = lambda t, c, a=aV: f'ds_read_b128 {tup(VB[(2*t+c)%4], 4)}, {a} offset:{t*1216 + c*608}'
    mA = lambda u, C='0': f'v_mfma_f32_32x32x16_bf16 {tup(SB[u%2], 16)}, {tup(KB[(u//2)%2], 4)}, {tup(QM[u%2], 4)}, {C}'
    mB = lambda u: f'v_mfma_f32_32x32x8_bf16 {tup(SB[u%2], 16)}, {tup(RB[(u//8)%2], 2)}, {tup(QR[u%2] + 2*((u//2)%4), 2)}, {tup(SB[u%2], 16)}'
    mP = lambda u, c: f'v_smfmac_f32_32x32x32_bf16 {tup(O[u%2], 16)}, {tup(VB[(2*(u//2)+c)%4], 4)}, {tup(SB[u%2]+8*c, 8)}, {idx}'
    ex = lambda u, a, b: [f'v_exp_f32 v{SB[u%2]+i}, v{SB[u%2]+i}' for i in range(a, b)]
    p(rK(0), rR(0), rK(1), rV(0, 0), rV(0, 1), 's_waitcnt vmcnt(6)')
    for b in range(2):
        p([f'v_mov_b64 {tup(QM[b] + 2*i, 2)}, {tup(NQ[b] + 2*i, 2)}' for i in range(2)], [f'v_cndmask_b32 v{QR[b]+i}, 0, v{NR[b]}, s[52:53]' for i in (0, 5)], [f'v_cndmask_b32 v{QR[b]+i}, v{NR[b]}, 0, s[52:53]' for i in (2, 7)])
    p('s_waitcnt lgkmcnt(0)', mA(0), [f'v_cndmask_b32 v{O[0]+i}, 0, v{NO[0]+i}, s[54:55]' for i in range(12)], mB(0), [f'v_cndmask_b32 v{O[1]+i}, 0, v{NO[1]+i}, s[54:55]' for i in range(12)])
    p([f'v_mov_b64 {tup(SB[1] + 8 + 2*i, 2)}, 0' for i in range(4)], [f'v_mov_b64 {tup(VB[3] + 2*i, 2)}, 0' for i in range(2)])
    p(f's_and_b32 {T[8]}, {sNXT}, 7', f's_lshr_b32 {T[0]}, {sNXT}, 16', f's_cmp_gt_u32 {T[0]}, {sC_}', 's_cbranch_scc1 BR_loop', prefetch(T[8]))
    head = fix_hazards(p.lines, timed=False)
    p = Prog()
    p('BR_loop:')
    for u in range(16):
        t = u // 2
        p(ex(u, 0, 2), mP(u - 1, 1), rV(t + 1, 0) if u % 2 == 0 else rK(t + 2), ex(u, 2, 6), mA(u + 1), ex(u, 6, 10), mB(u + 1), ex(u, 10, 14), mP(u, 0))
        if u % 2 == 0: p(rV(t + 1, 1))
        elif u % 8 == 3: p(rR(t + 3))
        elif u == 15: p(f's_sub_u32 {sNK}, {sNK}, 1', f's_cmp_lg_u32 {sNK}, 0')
        p(ex(u, 14, 16))
    p(f'v_add_u32 {aK}, 8192, {aK}', f'v_add_u32 {aR}, 1024, {aR}', f'v_add_u32 {aV}, 9728, {aV}', 's_cbranch_scc1 BR_loop')
    loop = fix_hazards(auto_waits(p.lines, loop=True), loop=True)
    p = Prog()
    p(mP(15, 1), f's_lshl_b32 {T[0]}, {sQ}, 3', f's_add_u32 {T[0]}, {T[0]}, {sW}', 's_waitcnt lgkmcnt(0)', f's_bitcmp1_b32 {sCUR}, 13', 's_cbranch_scc1 BR_fin')
    p(f's_lshl_b32 {T[1]}, {sH}, 6', f's_add_u32 {T[0]}, {T[0]}, {T[1]}', f's_mul_i32 {T[0]}, {T[0]}, 3072', f's_add_u32 {T[0]}, {T[0]}, {WS_PART}', f's_add_u32 {T[1]}, {T[0]}, {4*3072}', 's_nop 7')
    p([f'buffer_store_dwordx4 {tup(O[b] + 4*i, 4)}, {vL}, {WS}, {T[b]} offen offset:{1024*i}' for b in range(2) for i in range(3)], 's_branch BR_next')
    p('BR_fin:', f's_mul_i32 {T[0]}, {T[0]}, 36864', f's_add_u32 {T[0]}, {T[0]}, {WS_BO}', f's_lshl_b32 {T[1]}, {sH}, 10', f's_add_u32 {T[1]}, {T[1]}, {T[0]}', f's_lshr_b32 {T[2]}, {sH}, 2', f's_lshl_b32 {T[2]}, {T[2]}, 9',
      f's_and_b32 {T[3]}, {sH}, 3', f's_lshl_b32 {T[3]}, {T[3]}, 2', f's_add_u32 {T[2]}, {T[2]}, {T[3]}', f's_add_u32 {T[2]}, {T[2]}, {T[0]}', f's_add_u32 {T[2]}, {T[2]}, 32768')
    norm = lambda b: [f'v_mov_b32 v6, v{O[b]+10}', f'v_mov_b32 v7, v{O[b]+10}', 'v_permlane32_swap_b32 v6, v7', 'v_rcp_f32 v7, v6']
    for b in range(2):
        p(norm(b), 'v_max_f32 v11, v6, v7', f'v_cmp_nge_f32 vcc, {f32bits(2.0**60)}, v11', f's_cbranch_vccnz BR_slow{b}' if not cfg.get('forcefb') else f's_branch BR_slow{b}', f'BR_out{b}:')
        p([f'v_mul_f32 v{O[b]+i}, v{O[b]+i}, v7' for i in range(10)], [f'v_cvt_pk_bf16_f32 v{O[b]+u}, v{O[b]+2*u}, v{O[b]+2*u+1}' for u in range(5)])
        p(f'buffer_store_dwordx4 {tup(O[b], 4)}, {vL}, {WS}, {T[1]} offen sc1', 's_mov_b32 exec_hi, 0', f'buffer_store_dword v{O[b]+4}, {vL}, {WS}, {T[2]} offen sc1', 's_mov_b32 exec_hi, -1')
        if b == 0: p(f's_add_u32 {T[1]}, {T[1]}, {4*36864}', f's_add_u32 {T[2]}, {T[2]}, {4*36864}')
    p(f's_lshl_b32 {T[0]}, {sQ}, 7', f's_add_u32 {T[0]}, {T[0]}, {FL_BA}', 'v_mov_b32 v6, 1', 's_waitcnt vmcnt(0)', 's_barrier', f's_cmp_lg_u32 {sW}, 0', 's_cbranch_scc1 BR_next',
      's_mov_b64 exec, 1', f'buffer_atomic_add v6, off, {WS}, {T[0]}', 's_mov_b64 exec, -1')
    p('BR_next:', f's_lshr_b32 {T[0]}, {sNXT}, 16', f's_cmp_le_u32 {T[0]}, {sC_}', 's_cbranch_scc1 BR_task', f's_add_u32 {T[0]}, {T[0]}, {sLAYER}', f's_cmp_le_u32 {T[0]}, 8', 's_cbranch_scc1 BR_phase', 's_waitcnt vmcnt(0)', next_layer('BR_layer', cfg))
    for b in range(2):
        def pas(lbl, second):
            p(f'v_mov_b32 {aK}, {vL}', f'v_mov_b32 {aR}, {vR}', f'v_mov_b32 {aV}, {vV}', f's_mov_b32 {T[8]}, 16', f'{lbl}:', rR(0))
            for t in range(4):
                u = 2 * t + b
                p(rK(t), [rV(t, c) for c in range(2)] if second else None, 's_waitcnt lgkmcnt(0)', mA(u, tup(NM, 16) if second else '0'), mB(u))
                if second: p(ex(u, 0, 16), mP(u, 0), mP(u, 1))
                else: p([f'v_max3_f32 v6, v6, v{SB[b]+2*i}, v{SB[b]+2*i+1}' for i in range(8)])
            p(f'v_add_u32 {aK}, 4096, {aK}', f'v_add_u32 {aR}, 512, {aR}', f'v_add_u32 {aV}, {4*1216}, {aV}', f's_sub_u32 {T[8]}, {T[8]}, 1', f's_cmp_lg_u32 {T[8]}, 0', f's_cbranch_scc1 {lbl}', 's_nop 15')
        p(f'BR_slow{b}:', 's_nop 15', 'v_mov_b32 v6, 0xff800000')
        pas(f'BR_p1{b}', False)
        p('v_mov_b32 v7, v6', 'v_permlane32_swap_b32 v6, v7', 'v_max_f32 v6, v6, v7', [f'v_sub_f32 v{NM+i}, 0, v6' for i in range(16)], [f'v_mov_b32 v{O[b]+i}, 0' for i in range(16)])
        pas(f'BR_p2{b}', True)
        p(norm(b), 's_nop 1', f's_branch BR_out{b}')
    return head + loop + fix_hazards(['s_nop 1'] + p.lines, timed=False)

def bo_role(cfg, initwait):
    sRP, sCI, sCT, sSEG = 's34', 's35', 's36', 's37'
    T = [f's{i}' for i in range(40, 50)]
    ln, vL, aM, aR, aT, t0, t1 = 'v0', 'v1', 'v2', 'v3', 'v4', 'v6', 'v7'
    b = lambda i, n, d: f'v_bfe_u32 {d}, {ln}, {i}, {n}'
    p = Prog()
    p('v_and_b32 v0, 63, v0', f's_lshl_b32 {sCT}, {sCI}, 2', f's_add_u32 {sCT}, {sCT}, {sW}', f's_min_u32 {sCT}, {sCT}, 17')
    p(f'v_lshlrev_b32 {vL}, 4, {ln}', f's_lshl_b32 {T[0]}, {sCT}, 6', f'v_and_b32 {t1}, 3, {ln}', f'v_lshlrev_b32 {t1}, 4, {t1}', f'v_add_u32 {t1}, {T[0]}, {t1}')
    p(b(2, 2, aM), b(4, 1, t0), f'v_lshl_add_u32 {aM}, {t0}, 3, {aM}', b(5, 1, t0), f'v_lshl_add_u32 {aM}, {t0}, 2, {aM}', f'v_mul_u32_u24 {aM}, 1152, {aM}', f'v_add_u32 {aM}, {aM}, {t1}')
    p(b(3, 3, aR), f'v_mul_u32_u24 {aR}, 18, {aR}', b(2, 1, t0), f'v_add3_u32 {aR}, {aR}, {t0}, 16', f'v_mul_u32_u24 {aR}, 1152, {aR}', f'v_add_u32 {aR}, {aR}, {t1}', f's_mul_i32 {T[1]}, {sW}, 36864')
    for j in range(36): p(f's_add_u32 m0, {T[1]}, {j*1024}', f's_mov_b32 {T[3]}, {(18*j if j < 32 else 144*(j-32))*1152}', f'buffer_load_dwordx4 {aM if j < 32 else aR}, s[12:15], {T[3]} offen lds')
    p(b(2, 2, aT), b(5, 1, t0), f'v_lshl_add_u32 {aT}, {t0}, 3, {aT}', f'v_lshlrev_b32 {aT}, 6, {aT}', b(4, 1, t1), f'v_lshl_add_u32 {aT}, {t1}, 5, {aT}', b(0, 1, t1), f'v_lshl_add_u32 {aT}, {t1}, 4, {aT}', b(1, 1, t1),
      f'v_lshl_add_u32 {aT}, {t1}, 3, {aT}', f'v_add_u32 {aT}, {T[1]}, {aT}', 's_waitcnt vmcnt(0)')
    for j in range(36): p([f'ds_read_b64_tr_b16 a[{4*j+2*i}:{4*j+2*i+1}], {aT} offset:{(16*j+4*i)*64}' for i in range(2)])
    p('s_waitcnt lgkmcnt(0)', initwait, f's_mov_b32 {sSEG}, {sRP}', f's_mul_i32 {T[8]}, {sW}, 9216')
    p('BO_loop:', f's_lshr_b32 {T[0]}, {sSEG}, 3', f's_lshl_b32 {T[0]}, {T[0]}, 7', f's_add_u32 {T[0]}, {T[0]}, {FL_BA}', f's_cmp_lg_u32 {sW}, 0', 's_cbranch_scc1 BO_fl_ok', poll_ge('BO_fl', WS, T[0], 32, 1, 'v6'), 's_barrier')
    p(f's_mul_i32 {T[4]}, {sSEG}, 36864', f's_add_u32 {T[5]}, {T[4]}, {T[8]}', f's_add_u32 {T[5]}, {T[5]}, {WS_BO}')
    for i in range(9):
        if i % 4 == 0: p(f's_add_u32 m0, {T[8]}, {i*1024}', f's_add_u32 {T[3]}, {T[5]}, {i*1024}')
        p(f'buffer_load_dwordx4 {vL}, {WS}, {T[3]} offen offset:{(i%4)*1024} sc1 lds')
    p(f's_lshl_b32 {T[6]}, {sCT}, 11', f's_add_u32 {T[4]}, {T[4]}, {T[6]}', f's_add_u32 {T[5]}, {T[4]}, {WS_X1}', f's_add_u32 {T[4]}, {T[4]}, {WS_X2}')
    p([f'buffer_load_dwordx4 v[{24+4*c}:{27+4*c}], {vL}, {WS}, {T[5]} offen offset:{1024*c} sc1' for c in range(2)], 's_waitcnt vmcnt(2)', 's_barrier')
    head = fix_hazards(p.lines, timed=False)
    p = Prog()
    NW = 6
    rd = lambda j: f'ds_read_b128 v[{64+4*(j%NW)}:{67+4*(j%NW)}], {vL} offset:{j*1024}'
    p([rd(j) for j in range(NW - 1)])
    for j in range(36):
        p(f'v_mfma_f32_32x32x16_bf16 v[8:23], a[{4*j}:{4*j+3}], v[{64+4*(j%NW)}:{67+4*(j%NW)}], {"v[8:23]" if j else 0}', rd(j + NW - 1) if j + NW - 1 < 36 else None)
        if j == 20: p('s_waitcnt vmcnt(0)')
        if 20 <= j < 28: p(f'v_lshlrev_b32 v{40+2*(j-20)}, 16, v{24+j-20}', f'v_and_b32 v{41+2*(j-20)}, 0xffff0000, v{24+j-20}')
    p([f'v_add_f32 v{8+i}, v{8+i}, v{40+i}' for i in range(16)], [f'v_cvt_pk_bf16_f32 v{24+u}, v{8+2*u}, v{9+2*u}' for u in range(8)])
    p([f'buffer_store_dwordx4 v[{24+4*c}:{27+4*c}], {vL}, {WS}, {T[4]} offen offset:{1024*c} sc1' for c in range(2)])
    p(f's_lshl_b32 {T[0]}, {sSEG}, 7', f's_add_u32 {T[0]}, {T[0]}, {FL_X2}', 'v_mov_b32 v7, 1', 's_waitcnt vmcnt(0)', 's_barrier', f's_cmp_lg_u32 {sW}, 1', 's_cbranch_scc1 BO_ns',
      's_mov_b64 exec, 1', f'buffer_atomic_add v7, off, {WS}, {T[0]}', 's_mov_b64 exec, -1', 'BO_ns:', f's_add_u32 {sSEG}, {sSEG}, 2', f's_cmp_lt_u32 {sSEG}, {NSEG}', 's_cbranch_scc1 BO_loop', 's_branch L_end')
    return head + fix_hazards(auto_waits(p.lines))

def ln_role(cfg, initwait):
    p = Prog()
    p(f's_add_u32 s28, s8, {WS_X2}', 's_addc_u32 s29, s9, 0', initwait, 'LR_loop:', 's_lshl_b32 s40, s34, 7', f's_add_u32 s40, s40, {FL_X2}', f's_cmp_lg_u32 {sW}, 0', 's_cbranch_scc1 LR_fl_ok', poll_ge('LR_fl', WS, 's40', 5, 1, 'v6'), 's_barrier')
    p(roleq.ln_body('LR', 's34', False, LSTRIDE, ['s_barrier']), 's_add_u32 s34, s34, 4', f's_cmp_lt_u32 s34, {NSEG}', 's_cbranch_scc1 LR_loop', 's_branch L_end')
    return p.lines

if __name__ == '__main__':
    a = ba_role({}, []); print(len(a), len(bo_role({}, [])), len(ln_role({}, [])))
    i = a.index('BR_loop:'); r = estimate(a[i:i+420]); print([t for t, l in r if l.startswith('s_cbranch')][:1])
```
